```python
import torch

def _softmax(x, axis=-1):
    return torch.softmax(x, dim=axis)
def _gelu(x):
    return torch.nn.functional.gelu(x, approximate="tanh")
def _silu(x):
    return torch.nn.functional.silu(x)
def _sigmoid(x):
    return torch.sigmoid(x)
def _layernorm(x, axis=-1, eps=1e-5):
    m = x.mean(dim=axis, keepdim=True)
    v = x.var(dim=axis, keepdim=True, unbiased=False)
    return (x - m) / torch.sqrt(v + eps)
def _scatter_add(tgt, idx, src, axis=0):
    return tgt.clone().index_add_(axis, idx, src)
def _segment_sum(src, seg, n):
    out = torch.zeros((n,) + src.shape[1:], dtype=src.dtype)
    return out.index_add_(0, seg, src)
def _pad(x, pw):
    flat = tuple(v for pair in reversed(pw) for v in pair)
    return torch.nn.functional.pad(x, flat)

kernel_name = 'parallel_sum__softmax_full_mha__dense_activation_relu__prompt'

def setup_inputs():

    _w = (lambda a: (lambda t: t.to(torch.bfloat16) if t.is_floating_point() else t)(torch.as_tensor(a)))
    def _A_setup():
        B, S, D = 1, 2048, 448
        return {
            "x": _w((lambda *s: torch.randn(*s, dtype=torch.bfloat16) * 0.05)(B, S, D)),
            "wqkv": _w((lambda *s: torch.randn(*s, dtype=torch.bfloat16) * 0.2)(D, 3 * D)),
            "wo": _w((lambda *s: torch.randn(*s, dtype=torch.bfloat16) * 0.1)(D, D)),
        }
    _A_in = _A_setup()

    def _B_setup():
        B, S, D, Dff = 1, 2048, 448, 1792
        return {
            "x": _w((lambda *s: torch.randn(*s, dtype=torch.bfloat16) * 0.05)(B, S, D)),
            "w1": _w((lambda *s: torch.randn(*s, dtype=torch.bfloat16) * 0.2)(D, Dff)),
            "w2": _w((lambda *s: torch.randn(*s, dtype=torch.bfloat16) * 0.2)(Dff, D)),
        }
    _B_in = _B_setup()

    return {
        "A_x": _A_in["x"],
        "A_wqkv": _A_in["wqkv"],
        "A_wo": _A_in["wo"],
        "B_x": _B_in["x"],
        "B_w1": _B_in["w1"],
        "B_w2": _B_in["w2"],
    }

def reference(A_x, A_wqkv, A_wo, B_x, B_w1, B_w2):
    def _A_ref(x, wqkv, wo):
        B, S, D = x.shape
        H = 16; Dh = D // H
        qkv = (lambda x, *d: x.permute(*d))((x @ wqkv).reshape(B, S, 3, H, Dh), 2, 0, 3, 1, 4)
        q, k, v = qkv[0], qkv[1], qkv[2]
        scale = Dh ** -0.5
        scores = torch.einsum("bhqd,bhkd->bhqk", q, k) * scale
        p = _softmax(scores, axis=-1)
        o = torch.einsum("bhqk,bhkd->bhqd", p, v)
        return (lambda x, *d: x.permute(*d))(o, 0, 2, 1, 3).reshape(B, S, D) @ wo

    def _B_ref(x, w1, w2):
        h = torch.einsum("bsd,df->bsf", x, w1)
        zero = torch.zeros_like(h)
        h = torch.maximum(h, zero)
        return torch.einsum("bsf,fd->bsd", h, w2)

    x = A_x
    xn = _layernorm(x, axis=-1)
    return x + _A_ref(xn, A_wqkv, A_wo) + _B_ref(xn, B_w1, B_w2)
```

```python
import sys
HEAD = """.amdgcn_target "amdgcn-amd-amdhsa--gfx950"
.text
"""
def kernel(name, body, iters=64, vgpr=256, pre="", accum=None):
    accum = accum or min(vgpr, 256)
    s = f"""
.globl {name}
.p2align 8
.type {name},@function
{name}:
    s_load_dwordx2 s[4:5], s[0:1], 0
    s_load_dwordx2 s[20:21], s[0:1], 8
    s_waitcnt lgkmcnt(0)
    s_mov_b32 s8, s4
    s_mov_b32 s9, s5
    s_mov_b32 s10, 0x100000
    s_mov_b32 s11, 0x00020000
    s_mov_b32 s24, s20
    s_mov_b32 s25, s21
    s_mov_b32 s26, 0x4000000
    s_mov_b32 s27, 0x00020000
    v_lshrrev_b32 v1, 6, v0
    s_nop 1
    v_readfirstlane_b32 s3, v1
"""
    for i in range(2, min(vgpr,256)):
        s += f"    v_mov_b32 v{i}, 0\n"
    s += pre
    s += f"""
    s_mov_b32 s12, {iters}
    s_barrier
    s_memtime s[14:15]
    s_waitcnt lgkmcnt(0)
.p2align 6
L_{name}:
"""
    s += "\n".join("    " + l for l in body) + "\n"
    s += f"""
    s_sub_u32 s12, s12, 1
    s_cmp_lg_u32 s12, 0
    s_cbranch_scc1 L_{name}
    s_waitcnt vmcnt(0) lgkmcnt(0)
    s_memtime s[16:17]
    s_waitcnt lgkmcnt(0)
    s_sub_u32 s16, s16, s14
    s_lshl_b32 s18, s2, 4
    s_add_u32 s18, s18, s3
    s_lshl_b32 s18, s18, 2
    v_mov_b32 v1, s18
    v_mov_b32 v2, s16
    buffer_store_dword v2, v1, s[8:11], 0 offen
    s_waitcnt vmcnt(0)
    s_endpgm
"""
    kd = f"""
.p2align 6
.amdhsa_kernel {name}
  .amdhsa_next_free_vgpr {vgpr}
  .amdhsa_next_free_sgpr 102
  .amdhsa_accum_offset {accum}
  .amdhsa_group_segment_fixed_size 0
  .amdhsa_kernarg_size 16
  .amdhsa_user_sgpr_count 2
  .amdhsa_user_sgpr_kernarg_segment_ptr 1
  .amdhsa_system_sgpr_workgroup_id_x 1
.end_amdhsa_kernel
"""
    md = f"""  - .name: {name}
    .symbol: {name}.kd
    .kernarg_segment_size: 16
    .kernarg_segment_align: 8
    .group_segment_fixed_size: 0
    .private_segment_fixed_size: 0
    .wavefront_size: 64
    .sgpr_count: 102
    .vgpr_count: {vgpr}
    .max_flat_workgroup_size: 1024
    .args:
      - {{.name: kernargs, .size: 16, .offset: 0, .value_kind: by_value}}
"""
    return s, kd, md

def build(kernels, fn):
    t = HEAD + "".join(k[0] for k in kernels) + '\n.section .rodata,"a"\n' + "".join(k[1] for k in kernels)
    t += "\n.amdgpu_metadata\n---\namdhsa.version: [1, 2]\namdhsa.kernels:\n" + "".join(k[2] for k in kernels) + "...\n.end_amdgpu_metadata\n"
    open(fn, "w").write(t)
```

```python
import json
from mbgen import *
ks = []; runs = []
def add(name, body, iters=1, vgpr=128, cfg=((256,256),), note="", pre="", lds=0):
    ks.append(kernel(name, body, iters, vgpr, pre))
    runs.append(dict(k=name, cfg=list(cfg), iters=1, note=note, lds=lds, modes=["first", "warm"]))
def pf(name, nbytes, stride, wait=True):
    s = f"    s_getpc_b64 s[40:41]\n"
    s += f"    v_mul_u32_u24 v3, {stride}, v0\n"
    n = (nbytes + 256 * stride - 1) // (256 * stride)
    for i in range(n):
        s += f"    global_load_dword v{4+i}, v3, s[40:41]\n"
        s += f"    v_add_u32 v3, {256*stride}, v3\n"
    if wait:
        s += "    s_waitcnt vmcnt(0)\n"
    return s
body = lambda n: [f"v_fma_f32 v{16+i%16}, v{32+i%16}, v{48+i%16}, v{64+i%16}" for i in range(n)]
for rep in range(2):
    for n in (1024, 4096):
        add(f"nopf_{n}_{rep}", body(n), note=f"{n} x 8B fma, ideal {4*n}")
        add(f"pf128_{n}_{rep}", body(n), note=f"{n} x 8B fma, ideal {4*n}, L2 prefetch waited", pre=pf("a", 8 * n + 256, 128))
        add(f"pf64_{n}_{rep}", body(n), note=f"{n} x 8B fma, ideal {4*n}, L2 prefetch 64B waited", pre=pf("a", 8 * n + 256, 64))
        add(f"pf128nw_{n}_{rep}", body(n), note=f"{n} x 8B fma, ideal {4*n}, L2 prefetch not waited", pre=pf("a", 8 * n + 256, 128, wait=False))
ks.append(kernel("padk", body(8192), 1, 128))
build(ks, "mb/mb6.s")
json.dump(dict(s="work/mb/mb6.s", runs=runs), open("mb/mb6.json", "w"))
```

```python
from dsl import *
NAME = "parallel_sum__softmax_full_mha__dense_activation_relu__prompt"
WS_QF = 0x000000
WS_KV = 0x200000
WS_AF = 0x600000
WS_WF = 0xF00000
WS_RS = 0x1100000
WS_SIZE = 0x10000000
AF_TT = 144 * 1024
X_BYTES = 2048 * 896
WQKV_BYTES = 448 * 2688
WO_BYTES = 448 * 896
W1_BYTES = 448 * 3584
W2_BYTES = 1792 * 896
import math, struct
def f32(x): return "0x%08x" % struct.unpack("<I", struct.pack("<f", x))[0]
QSCALE = 28 ** -0.5 * math.log2(math.e)
MFMA = "v_mfma_f32_32x32x16_bf16"

def srd(A, d, base, size):
    A(f"s_mov_b32 {s(d)}, {s(base)}")
    A(f"s_mov_b32 {s(d+1)}, {s(base+1)}")
    A(f"s_mov_b32 {s(d+2)}, {size}")
    A(f"s_mov_b32 {s(d+3)}, 0x00020000")

def interleave(A, mfmas, fillers):
    n = len(mfmas); k = 0
    def em(x):
        if isinstance(x, list):
            for y in x: em(y)
        elif isinstance(x, tuple): A(x[0], tag=x[1])
        elif callable(x): x()
        else: A(x)
    for i, m in enumerate(mfmas):
        em(m)
        upto = (len(fillers) * (i + 1) + n - 1) // n
        while k < upto:
            em(fillers[k]); k += 1

def kernel_text(name, A):
    return f".globl {name}\n.p2align 8\n.type {name},@function\n{name}:\n" + A.text()

def kd_text(name, vgpr, accum, sgpr=102):
    return f""".p2align 6
.amdhsa_kernel {name}
  .amdhsa_next_free_vgpr {vgpr}
  .amdhsa_next_free_sgpr {sgpr}
  .amdhsa_accum_offset {accum}
  .amdhsa_group_segment_fixed_size 0
  .amdhsa_kernarg_size 72
  .amdhsa_user_sgpr_count 2
  .amdhsa_user_sgpr_kernarg_segment_ptr 1
  .amdhsa_system_sgpr_workgroup_id_x 1
.end_amdhsa_kernel
"""
HEADER = open("cdna_kernels/" + NAME + ".s.ref").read().split("; Override launch")[0]
```

```python
import re

def v(i, n=1): return f"v{i}" if n == 1 else f"v[{i}:{i+n-1}]"
def a(i, n=1): return f"a{i}" if n == 1 else f"a[{i}:{i+n-1}]"
def s(i, n=1): return f"s{i}" if n == 1 else f"s[{i}:{i+n-1}]"

class Asm:
    def __init__(self):
        self.lines = []
        self.vm = []
        self.lg = []
    def __call__(self, text, tag=None):
        for l in text.strip("\n").split("\n"):
            l = l.strip()
            if not l: continue
            self.lines.append(l)
            op = l.split()[0]
            if op.startswith(("buffer_", "global_")):
                self.vm.append(tag)
            elif op.startswith("ds_"):
                self.lg.append(tag)
    def label(self, name): self.lines.append(name + ":")
    def comment(self, t): self.lines.append("; " + t)
    def vmcnt_for(self, tag):
        idx = [i for i, t in enumerate(self.vm) if t == tag]
        assert idx, tag
        n = len(self.vm) - 1 - idx[-1]
        return min(n, 63)
    def lgkm_for(self, tag):
        idx = [i for i, t in enumerate(self.lg) if t == tag]
        assert idx, tag
        n = len(self.lg) - 1 - idx[-1]
        return min(n, 15)
    def wait_vm(self, tag): self(f"s_waitcnt vmcnt({self.vmcnt_for(tag)})")
    def wait_lg(self, tag): self(f"s_waitcnt lgkmcnt({self.lgkm_for(tag)})")
    def text(self):
        out = []
        for l in self.lines:
            if l.endswith(":") or l.startswith("."): out.append(l)
            else: out.append("    " + l)
        return "\n".join(out) + "\n"

_reg = re.compile(r"^(-|\|)?(?:abs\()?([vas])(?:(\d+)|\[(\d+):(\d+)\])\)?\|?$")
def regs_of(tok):
    tok = tok.strip()
    if tok in ("vcc",): return [("s", 106), ("s", 107)]
    if tok in ("vcc_lo",): return [("s", 106)]
    if tok in ("vcc_hi",): return [("s", 107)]
    if tok == "exec": return [("x", 0), ("x", 1)]
    if tok == "exec_lo": return [("x", 0)]
    if tok == "exec_hi": return [("x", 1)]
    if tok == "m0": return [("m", 0)]
    t = tok
    t = t.replace("-|", "|")
    m = _reg.match(t)
    if not m: return []
    k = m.group(2)
    if m.group(3) is not None: return [(k, int(m.group(3)))]
    return [(k, i) for i in range(int(m.group(4)), int(m.group(5)) + 1)]

TRANS = ("v_exp_", "v_log_", "v_rcp_", "v_rsq_", "v_sqrt_", "v_sin_", "v_cos_")
class Ins:
    __slots__ = ("text", "op", "kind", "dst", "src", "srcA", "srcB", "srcC", "passes", "tgt", "data", "nops", "lds", "idx")
    def __init__(self, text, idx):
        self.text = text; self.idx = idx
        t = text.split(";")[0].strip()
        parts = t.split(None, 1)
        op = self.op = parts[0]
        rest = parts[1] if len(parts) > 1 else ""
        ops = []; cur = ""; d = 0
        for ch in rest:
            if ch == "[": d += 1
            if ch == "]": d -= 1
            if ch == "," and d == 0: ops.append(cur.strip()); cur = ""
            else: cur += ch
        if cur.strip(): ops.append(cur.strip())
        mods = ""
        if ops:
            lp = ops[-1].split(None, 1)
            ops[-1] = lp[0]
            mods = lp[1] if len(lp) > 1 else ""
        R = [regs_of(o) for o in ops]
        self.dst = []; self.src = []; self.srcA = self.srcB = self.srcC = []; self.passes = 0; self.tgt = None; self.data = []; self.nops = 1; self.lds = False
        flat = lambda L: [x for l in L for x in l]
        if op.startswith("v_mfma"):
            self.kind = "mfma"; self.dst = R[0]; self.srcA, self.srcB, self.srcC = R[1], R[2], R[3]; self.src = flat(R[1:])
            self.passes = 8 if "32x32x16" in op else 4 if "16x16x32" in op else None
            assert self.passes, text
        elif op.startswith("v_"):
            self.kind = "valu"
            if op.startswith("v_cmp"):
                self.dst = R[0]; self.src = flat(R[1:])
                if op.startswith("v_cmpx"): self.dst = self.dst + [("x", 0), ("x", 1)]
            elif op.startswith("v_permlane") and "swap" in op:
                self.dst = R[0] + R[1]; self.src = R[0] + R[1]
            elif op.startswith(("v_dot2c", "v_fmac", "v_pk_fmac")) or "UNUSED_PRESERVE" in mods:
                self.dst = R[0]; self.src = flat(R)
            elif op.startswith(("v_add_co", "v_sub_co", "v_addc_co", "v_subb_co", "v_subrev_co", "v_mad_u64", "v_div_scale")):
                self.dst = R[0] + R[1]; self.src = flat(R[2:])
            elif op == "v_nop": pass
            else:
                self.dst = R[0]; self.src = flat(R[1:])
                if op.startswith("v_cndmask") and len(ops) == 3: self.src += [("s", 106), ("s", 107)]
        elif op.startswith(("buffer_", "global_")):
            self.kind = "vmem"
            self.lds = (" lds" in " " + mods) or "_lds_" in op
            if op.startswith(("buffer_inv", "buffer_wbl2")): pass
            elif self.lds: self.src = flat(R) + [("m", 0)]
            elif "load" in op: self.dst = R[0]; self.src = flat(R[1:])
            elif "store" in op:
                self.src = flat(R); self.data = R[0] if op.startswith("buffer_") else R[1]
            elif "atomic" in op:
                self.src = flat(R)
                if "sc0" in mods:
                    self.dst = R[0]
            else: raise ValueError(text)
        elif op.startswith("ds_"):
            self.kind = "ds"
            if op.startswith(("ds_read", "ds_bpermute", "ds_permute", "ds_swizzle")): self.dst = R[0]; self.src = flat(R[1:])
            else: self.src = flat(R)
        elif op.startswith("s_"):
            self.kind = "salu"
            if op == "s_nop": self.nops = int(ops[0], 0) + 1
            elif op.startswith(("s_cbranch", "s_branch")): self.kind = "branch"; self.tgt = ops[0]
            elif op in ("s_waitcnt",): self.kind = "wait"
            elif op in ("s_barrier", "s_endpgm", "s_setprio", "s_sleep"): pass
            elif op.startswith("s_cmp") or op.startswith("s_bitcmp"): self.src = flat(R)
            elif op.startswith(("s_load", "s_buffer_load", "s_memtime", "s_memrealtime")):
                self.kind = "smem"; self.dst = R[0]; self.src = flat(R[1:])
            else:
                self.dst = R[0]; self.src = flat(R[1:])
                if "saveexec" in op: self.dst = self.dst + [("x", 0), ("x", 1)]
        else:
            raise ValueError("unknown op " + text)

def check(lines, name="", verbose=False):
    ins = []; labels = {}
    for l in lines:
        l = l.strip()
        if not l or l.startswith(";") or l.startswith("."): continue
        if l.endswith(":"): labels[l[:-1]] = len(ins); continue
        ins.append(Ins(l, len(ins)))
    errs = {}
    def err(i, msg):
        errs.setdefault((i.idx, msg), f"{name}: [{i.idx}] {i.text}   <-- {msg}")
    seen = {}
    stack = [(0, [], [], [], frozenset())]
    steps = 0
    while stack:
        pc, hist, vm, lg, taken = stack.pop()
        hist = list(hist); vm = list(vm); lg = list(lg)
        while pc < len(ins):
            steps += 1
            assert steps < 3_000_000, "checker explosion"
            i = ins[pc]
            rd = set(i.src); wr = set(i.dst)
            for q, nm in ((vm, "vmcnt"), (lg, "lgkmcnt")):
                for p in q:
                    if p.dst and (set(p.dst) & (rd | wr)):
                        if (i.kind == p.kind and i.kind in ("vmem", "ds") and not (set(p.dst) & rd)):
                            continue
                        err(i, f"uses reg of outstanding {nm} op [{p.idx}] {p.text}")
            for (p, d) in hist:
                pw = set(p.dst)
                need = 0; why = ""
                if p.kind == "valu":
                    vw = {r for r in pw if r[0] in "va"}; sw = {r for r in pw if r[0] == "s"}; xw = {r for r in pw if r[0] == "x"}
                    isdot = p.op.startswith("v_dot")
                    if i.kind == "mfma" and vw & rd: need, why = (3 if isdot else 2), "VALU->MFMA"
                    if i.kind == "mfma" and xw: need, why = max(need, 4), "EXEC->MFMA"
                    if i.kind == "valu":
                        if p.op.startswith(TRANS) and not i.op.startswith(TRANS) and vw & rd: need, why = max(need, 1), "trans->valu"
                        if i.op.startswith("v_permlane") and vw & rd: need, why = max(need, 2), "valu->permlane"
                        if i.op.startswith(("v_readlane", "v_readfirstlane")) and vw & rd: need, why = max(need, 1), "valu->readlane"
                        if ("dpp" in i.text or "row_" in i.text or "quad_perm" in i.text) and vw & rd: need, why = max(need, 2), "valu->dpp"
                        if sw & rd: need, why = max(need, 4 if i.op.startswith(("v_readlane", "v_writelane")) else 2), "valu sgpr->valu"
                        if xw and i.op.startswith(("v_readlane", "v_readfirstlane", "v_writelane", "v_permlane")): need, why = max(need, 4), "exec->lane op"
                        if ("sdwa" in p.op or "op_sel" in p.text) and vw & (rd | wr): need, why = max(need, 1), "sdwa/opsel"
                        if isdot and vw & (rd | wr):
                            if i.op == p.op:
                                ab = set(i.src) - set(i.dst) if i.op.startswith("v_dot2c") else set(regs for regs in i.src[:-1])
                                if vw & ab: need, why = max(need, 3), "dot->dot AB"
                            else: need, why = max(need, 3), "dot->other"
                    if isdot and i.kind in ("vmem", "ds") and vw & rd: need, why = max(need, 3), "dot->mem"
                    if i.kind == "vmem" and sw & rd: need, why = max(need, 5), "valu sgpr->vmem"
                if p.kind == "mfma":
                    big = {8: 12, 4: 8}[p.passes]
                    if i.kind == "mfma":
                        if pw & (set(i.srcA) | set(i.srcB)): need, why = big, "mfma D->AB"
                        elif pw & set(i.srcC):
                            if not (list(p.dst) == list(i.srcC) and p.passes == i.passes): need, why = big - 2, "mfma D->C overlap"
                        elif pw & wr and list(p.dst) != list(i.dst): need, why = big, "mfma WAW overlap"
                    elif i.kind in ("valu", "vmem", "ds") and pw & (rd | wr): need, why = big, "mfma D->valu/mem"
                    if i.kind == "valu" and set(p.srcC) & wr:
                        n2 = {8: 7, 4: 3}[p.passes]
                        if n2 > need: need, why = n2, "mfma C WAR"
                if p.kind == "salu" and ("m", 0) in pw and i.kind == "vmem" and i.lds: need, why = 1, "m0->lds dma"
                if p.kind == "vmem" and len(p.data) >= 3 and set(p.data) & wr: need, why = (2 if i.kind in ("valu", "mfma") else 1), "store data WAR"
                if need > d: err(i, f"{why}: needs {need} has {d} after [{p.idx}] {p.text}")
            hist = [(p, d + i.nops) for (p, d) in hist if d + i.nops < 20]
            hist.append((i, 0))
            if i.kind == "vmem" and not i.op.startswith(("buffer_inv",)): vm.append(i)
            if i.kind in ("ds", "smem"): lg.append(i)
            if i.kind == "wait":
                m = re.search(r"vmcnt\((\d+)\)", i.text)
                if m:
                    n = int(m.group(1)); vm = vm[len(vm) - n:] if n < len(vm) and n > 0 else ([] if n == 0 else vm)
                m = re.search(r"lgkmcnt\((\d+)\)", i.text)
                if m:
                    n = int(m.group(1))
                    if any(x.kind == "smem" for x in lg) and n > 0: pass
                    else: lg = lg[len(lg) - n:] if n < len(lg) and n > 0 else ([] if n == 0 else lg)
            if len(vm) > 63: err(i, "more than 63 vmem outstanding (hw stalls; ok) but tracking")
            if i.op == "s_endpgm": break
            if i.kind == "branch":
                t = labels[i.tgt]
                uncond = i.op == "s_branch"
                if t <= pc:
                    if pc not in taken:
                        if not uncond: stack.append((pc + 1, list(hist), list(vm), list(lg), taken))
                        taken = taken | {pc}; pc = t; continue
                    elif uncond: break
                else:
                    key = (t, pc, taken)
                    if uncond: pc = t; continue
                    if key not in seen:
                        seen[key] = 1
                        stack.append((t, list(hist), list(vm), list(lg), taken))
            pc += 1
    for e in sorted(errs): print("HAZARD", errs[e])
    return len(errs)
```

```python
from common import *

def gen_k1():
    A = Asm()
    sX, sWQ, sWO, sW1, sW2, sOUT, sWS = 4, 6, 8, 12, 14, 16, 20
    rX, rQ, r1, rW = 24, 28, 32, 36
    sWave, sRB, sCB, sTT, sT0, sT1, sT2, sOff, sM0x, sM0q, sM0w, sOnes = 40, 41, 42, 43, 44, 45, 46, 47, 48, 49, 50, 51
    sQS, sCB7, sIsK = 52, 53, 54
    vL, vL32, vG = 0, 1, 2
    T = [3, 4, 5, 6, 7, 8, 9]
    vXD = 10
    vSX, vSXX = 14, 15
    XF, ACC, WB = 16, 128, 192
    vQD, vWD, vXR, vQR, vCS, vWR = 224, 227, 228, 232, 236, 240
    vQKA, vVA, vKPA, vVPA = 176, 184, 185, 186
    LQ = 114688
    LEX = LQ + 3 * 12288

    A("s_load_dwordx16 s[4:19], s[0:1], 0")
    A("s_load_dwordx2 s[20:21], s[0:1], 64")
    A("s_cmp_ge_u32 s2, 256")
    A("s_cbranch_scc1 K1_END")
    A(f"v_lshrrev_b32 {v(T[0])}, 6, v0")
    A(f"v_and_b32 {v(vL)}, 63, v0")
    A(f"v_readfirstlane_b32 {s(sWave)}, {v(T[0])}")
    A(f"v_and_b32 {v(vL32)}, 31, {v(vL)}")
    A(f"v_lshrrev_b32 {v(vG)}, 5, {v(vL)}")
    A("s_cmp_ge_u32 s2, 224")
    A("s_cbranch_scc1 K1_RELAY")
    A(f"s_and_b32 {s(sT0)}, s2, 3")
    A(f"s_lshl_b32 {s(sT0)}, {s(sT0)}, 2")
    A(f"s_bfe_u32 {s(sT1)}, s2, 0x20003")
    A(f"s_add_u32 {s(sRB)}, {s(sT0)}, {s(sT1)}")
    A(f"s_bfe_u32 {s(sIsK)}, s2, 0x10002")
    A(f"s_mul_i32 {s(sT0)}, {s(sIsK)}, 7")
    A(f"s_lshr_b32 {s(sCB7)}, s2, 5")
    A(f"s_add_u32 {s(sCB)}, {s(sT0)}, {s(sCB7)}")
    A(f"s_lshl_b32 {s(sTT)}, {s(sRB)}, 2")
    A(f"s_add_u32 {s(sTT)}, {s(sTT)}, {s(sWave)}")
    A(f"s_lshl_b32 {s(sT0)}, {s(sTT)}, 5")
    A(f"v_lshrrev_b32 {v(T[0])}, 3, {v(vL)}")
    A(f"v_add_u32 {v(T[0])}, {s(sT0)}, {v(T[0])}")
    A(f"v_mul_u32_u24 {v(T[0])}, 896, {v(T[0])}")
    A(f"v_and_b32 {v(T[1])}, 7, {v(vL)}")
    A(f"v_lshrrev_b32 {v(T[2])}, 4, {v(vL)}")
    A(f"v_xor_b32 {v(T[1])}, {v(T[1])}, {v(T[2])}")
    A(f"v_lshl_add_u32 {v(vXD)}, {v(T[1])}, 4, {v(T[0])}")
    A(f"v_xor_b32 {v(vXD+1)}, 64, {v(vXD)}")
    A(f"v_add_u32 {v(vXD+1)}, 7168, {v(vXD+1)}")
    A(f"v_add_u32 {v(vXD+2)}, 14336, {v(vXD)}")
    A(f"v_add_u32 {v(vXD+3)}, 14336, {v(vXD+1)}")
    A(f"s_mul_i32 {s(sT0)}, {s(sWave)}, 192")
    A(f"s_lshl_b32 {s(sT1)}, {s(sCB)}, 7")
    A(f"s_lshl_b32 {s(sT2)}, {s(sCB)}, 6")
    A(f"s_add_u32 {s(sT2)}, {s(sT2)}, {1792 - 128}")
    for i in range(3):
        A(f"v_add_u32 {v(T[0])}, {s(sT0)}, {v(vL)}")
        if i: A(f"v_add_u32 {v(T[0])}, {64*i}, {v(T[0])}")
        A(f"v_mul_u32_u24 {v(T[1])}, 43691, {v(T[0])}")
        A(f"v_lshrrev_b32 {v(T[1])}, 19, {v(T[1])}")
        A(f"v_mul_u32_u24 {v(T[2])}, 12, {v(T[1])}")
        A(f"v_sub_u32 {v(T[2])}, {v(T[0])}, {v(T[2])}")
        A(f"v_cmp_gt_u32 vcc, 8, {v(T[2])}")
        A(f"v_mov_b32 {v(T[3])}, {s(sT2)}")
        A(f"v_mov_b32 {v(T[4])}, {s(sT1)}")
        A(f"v_cndmask_b32 {v(T[3])}, {v(T[3])}, {v(T[4])}, vcc")
        A(f"v_lshl_add_u32 {v(T[3])}, {v(T[2])}, 4, {v(T[3])}")
        A(f"v_mul_u32_u24 {v(T[1])}, 2688, {v(T[1])}")
        A(f"v_add_u32 {v(vQD+i)}, {v(T[1])}, {v(T[3])}")
    A(f"s_lshl_b32 {s(sM0x)}, {s(sWave)}, 12")
    A(f"s_mul_i32 {s(sM0q)}, {s(sWave)}, 3072")
    A(f"s_add_u32 {s(sM0q)}, {s(sM0q)}, {LQ}")
    A("s_waitcnt lgkmcnt(0)")
    srd(A, rX, sX, X_BYTES); srd(A, rQ, sWQ, WQKV_BYTES); srd(A, r1, sW1, W1_BYTES); srd(A, rW, sWS, WS_SIZE)

    def dma_x(c):
        L = []
        for i in range(4):
            L.append([f"s_add_u32 m0, {s(sM0x)}, {c*16384 + i*1024 - 128*c}", "s_nop 0",
                      (f"buffer_load_dwordx4 {v(vXD+i)}, {s(rX,4)}, 0 offen offset:{128*c} lds", f"x{c}")])
        return L
    def dma_q(c):
        L = []
        for i in range(3):
            L.append([f"s_add_u32 m0, {s(sM0q)}, {(c%4)*12288 + i*1024}", f"s_mov_b32 {s(sOff)}, {c*64*2688}",
                      (f"buffer_load_dwordx4 {v(vQD+i)}, {s(rQ,4)}, {s(sOff)} offen lds", f"q{c}")])
        return L
    def dma_w(c):
        L = []
        for i in range(4):
            L.append([f"s_add_u32 m0, {s(sM0x)}, {c*16384 + i*1024}", f"s_mov_b32 {s(sOff)}, {c*64*3584 + i*14336}",
                      (f"buffer_load_dwordx4 {v(vWD)}, {s(r1,4)}, {s(sOff)} offen lds", f"w{c}")])
        return L
    def emit(L): interleave(A, L, [])
    for c in range(7):
        emit(dma_x(c))
        if c < 4: emit(dma_q(c))
    A(f"s_lshl_b32 {s(sT0)}, {s(sWave)}, 4")
    A(f"v_lshrrev_b32 {v(T[0])}, 4, {v(vL)}")
    A(f"v_add_u32 {v(T[1])}, {s(sT0)}, {v(T[0])}")
    A(f"v_mul_u32_u24 {v(T[1])}, 3584, {v(T[1])}")
    A(f"v_bfe_u32 {v(T[2])}, {v(vL)}, 2, 2")
    A(f"v_xor_b32 {v(T[3])}, {v(T[2])}, {v(T[0])}")
    A(f"v_lshl_add_u32 {v(T[1])}, {v(T[3])}, 6, {v(T[1])}")
    A(f"v_and_b32 {v(T[4])}, 3, {v(vL)}")
    A(f"v_lshl_add_u32 {v(T[1])}, {v(T[4])}, 4, {v(T[1])}")
    A(f"s_lshl_b32 {s(sT0)}, {s(sCB)}, 8")
    A(f"v_add_u32 {v(vWD)}, {s(sT0)}, {v(T[1])}")
    A(f"v_bfe_u32 {v(T[5])}, {v(vL)}, 4, 1")
    A(f"v_lshlrev_b32 {v(T[5])}, 5, {v(T[5])}")
    A(f"v_lshl_add_u32 {v(T[5])}, {v(T[4])}, 3, {v(T[5])}")
    A(f"v_lshl_add_u32 {v(T[6])}, {v(vG)}, 3, {v(T[2])}")
    A(f"v_bfe_u32 {v(T[0])}, {v(vL32)}, 1, 3")
    A(f"v_lshlrev_b32 {v(T[1])}, 7, {v(vL32)}")
    A(f"v_add_u32 {v(T[1])}, {s(sM0x)}, {v(T[1])}")
    for j in range(4):
        A(f"s_add_u32 {s(sT0)}, {s(sWave)}, {j}")
        A(f"s_and_b32 {s(sT0)}, {s(sT0)}, 3")
        A(f"s_lshl_b32 {s(sT1)}, {s(sT0)}, 1")
        A(f"v_add_u32 {v(T[3])}, {s(sT1)}, {v(vG)}")
        A(f"v_xor_b32 {v(T[3])}, {v(T[3])}, {v(T[0])}")
        A(f"v_lshl_add_u32 {v(vXR+j)}, {v(T[3])}, 4, {v(T[1])}")
        A(f"s_lshl_b32 {s(sT1)}, {s(sT0)}, 4")
        A(f"v_add_u32 {v(T[3])}, {s(sT1)}, {v(T[6])}")
        A(f"v_mul_u32_u24 {v(T[4])}, 192, {v(T[3])}")
        A(f"v_add_u32 {v(T[4])}, {LQ}, {v(T[4])}")
        A(f"v_add_u32 {v(vQR+j)}, {v(T[4])}, {v(T[5])}")
        A(f"v_lshl_add_u32 {v(T[4])}, {v(T[3])}, 8, {v(T[5])}")
        A(f"v_lshl_add_u32 {v(vWR+4*j)}, {v(T[2])}, 6, {v(T[4])}")
        for t in range(1, 4):
            A(f"v_xor_b32 {v(vWR+4*j+t)}, {64*t}, {v(vWR+4*j)}")
    A(f"s_add_u32 {s(sT2)}, {s(sIsK)}, 17")
    A(f"s_add_u32 {s(sT1)}, {s(sIsK)}, 11")
    A(f"s_lshl_b32 {s(sT1)}, {s(sTT)}, {s(sT1)}")
    A(f"s_mul_i32 {s(sT0)}, {s(sIsK)}, {WS_KV - WS_QF}")
    A(f"s_add_u32 {s(sT1)}, {s(sT1)}, {s(sT0)}")
    if WS_QF: A(f"s_add_u32 {s(sT1)}, {s(sT1)}, {WS_QF}")
    A(f"v_lshlrev_b32 {v(T[5])}, 4, {v(vL32)}")
    A(f"v_add_u32 {v(T[5])}, {s(sT1)}, {v(T[5])}")
    A(f"s_lshl_b32 {s(sT0)}, {s(sCB7)}, 4")
    A(f"v_add_u32 {v(T[6])}, {s(sT0)}, {v(vG)}")
    for j in range(8):
        A(f"v_add_u32 {v(T[0])}, {2*j}, {v(T[6])}")
        A(f"v_mul_u32_u24 {v(T[1])}, 9363, {v(T[0])}")
        A(f"v_lshrrev_b32 {v(T[1])}, 16, {v(T[1])}")
        A(f"v_mul_u32_u24 {v(T[2])}, 7, {v(T[1])}")
        A(f"v_sub_u32 {v(T[2])}, {v(T[0])}, {v(T[2])}")
        A(f"v_lshlrev_b32 {v(T[1])}, {s(sT2)}, {v(T[1])}")
        A(f"v_lshrrev_b32 {v(T[3])}, 1, {v(T[2])}")
        A(f"v_lshl_add_u32 {v(T[1])}, {v(T[3])}, 9, {v(T[1])}")
        A(f"v_and_b32 {v(T[3])}, 1, {v(T[2])}")
        A(f"v_lshl_add_u32 {v(T[1])}, {v(T[3])}, 3, {v(T[1])}")
        A(f"v_add_u32 {v(vQKA+j)}, {v(T[1])}, {v(T[5])}")
    A(f"s_lshl_b32 {s(sT0)}, {s(sCB)}, 5")
    A(f"v_add_u32 {v(T[0])}, {s(sT0)}, {v(vL32)}")
    A(f"v_mul_u32_u24 {v(T[1])}, 9363, {v(T[0])}")
    A(f"v_lshrrev_b32 {v(T[1])}, 18, {v(T[1])}")
    A(f"v_mul_u32_u24 {v(T[2])}, 28, {v(T[1])}")
    A(f"v_sub_u32 {v(T[2])}, {v(T[0])}, {v(T[2])}")
    A(f"v_add_u32 {v(T[3])}, 2, {v(T[2])}")
    A(f"v_cmp_gt_u32 vcc, 26, {v(T[2])}")
    A(f"s_lshl_b32 {s(sT1)}, {s(sTT)}, 12")
    A(f"s_add_u32 {s(sT1)}, {s(sT1)}, {WS_KV}")
    A(f"v_cndmask_b32 {v(T[2])}, {v(T[3])}, {v(T[2])}, vcc")
    A(f"v_lshl_add_u32 {v(T[2])}, {v(vG)}, 5, {v(T[2])}")
    A(f"v_lshlrev_b32 {v(T[2])}, 4, {v(T[2])}")
    A(f"v_lshl_add_u32 {v(T[2])}, {v(T[1])}, 18, {v(T[2])}")
    A(f"v_add_u32 {v(vVA)}, {s(sT1)}, {v(T[2])}")
    A(f"s_lshl_b32 {s(sT0)}, {s(sCB)}, 1")
    A(f"v_add_u32 {v(T[0])}, {s(sT0)}, {v(vG)}")
    A(f"v_lshlrev_b32 {v(T[0])}, 18, {v(T[0])}")
    A(f"v_lshl_add_u32 {v(T[0])}, {v(vL32)}, 4, {v(T[0])}")
    A(f"v_add_u32 {v(vKPA)}, {s(sT1)}, {v(T[0])}")
    A(f"s_lshl_b32 {s(sT0)}, {s(sCB)}, 2")
    A(f"v_lshrrev_b32 {v(T[0])}, 4, {v(vL)}")
    A(f"v_add_u32 {v(T[0])}, {s(sT0)}, {v(T[0])}")
    A(f"v_lshlrev_b32 {v(T[0])}, 18, {v(T[0])}")
    A(f"v_bfe_u32 {v(T[1])}, {v(vL)}, 2, 2")
    A(f"v_lshl_add_u32 {v(T[0])}, {v(T[1])}, 9, {v(T[0])}")
    A(f"v_bfe_u32 {v(T[1])}, {v(vL)}, 1, 1")
    A(f"v_lshl_add_u32 {v(T[0])}, {v(T[1])}, 6, {v(T[0])}")
    A(f"v_and_b32 {v(T[1])}, 1, {v(vL)}")
    A(f"v_lshl_add_u32 {v(T[0])}, {v(T[1])}, 4, {v(T[0])}")
    A(f"v_add_u32 {v(vVPA)}, {s(sT1)}, {v(T[0])}")
    A(f"v_mov_b32 {v(188)}, 0x3f803f80")
    A(f"v_mov_b32 {v(189)}, 0x00003f80")
    A(f"s_cmp_ge_u32 {s(sCB)}, 8")
    A("s_cbranch_scc1 K1_NOPAD")
    A(f"buffer_store_dwordx2 {v(188,2)}, {v(vKPA)}, {s(rW,4)}, 0 offen offset:{1024+512+8}")
    A(f"s_cmp_ge_u32 {s(sCB)}, 4")
    A("s_cbranch_scc1 K1_NOPAD")
    A(f"v_mul_u32_u24 {v(T[1])}, 0x3f80, {v(T[1])}")
    A(f"v_lshl_add_u32 {v(188)}, {v(T[1])}, 16, {v(T[1])}")
    A(f"v_mov_b32 {v(189)}, {v(188)}")
    A(f"v_mov_b32 {v(190)}, {v(188)}")
    A(f"v_mov_b32 {v(191)}, {v(188)}")
    A(f"buffer_store_dwordx4 {v(188,4)}, {v(vVPA)}, {s(rW,4)}, 0 offen offset:{2048+26*16}")
    A.label("K1_NOPAD")
    A.vm = A.vm[:-2]
    A(f"s_mov_b32 {s(sOnes)}, 0x3f803f80")
    A(f"s_mov_b32 {s(sQS)}, {f32(QSCALE)}")
    A(f"s_cmp_eq_u32 {s(sIsK)}, 0")
    A(f"s_cselect_b32 {s(sQS)}, {s(sQS)}, 1.0")
    for r in (vSX, vSXX, vCS, vCS+1, vCS+2, vCS+3):
        A(f"v_mov_b32 {v(r)}, 0")

    def xf(c, j): return XF + (4*c + j) * 4
    def wb(b, t): return WB + 16*b + 4*t
    def reads_p1(c, j, b):
        L = []
        if j == 0:
            for jj in range(4):
                L.append((f"ds_read_b128 {v(xf(c,jj),4)}, {v(vXR+jj)} offset:{(c%4)*16384}", "rd"))
        for t in range(3):
            for h in range(2):
                L.append((f"ds_read_b64_tr_b16 {v(wb(b,t)+2*h,2)}, {v(vQR+j)} offset:{(c%4)*12288 + t*64 + h*768}", "rd"))
        return L
    def reads_p2(c, j, b):
        L = []
        for t in range(4):
            for h in range(2):
                L.append((f"ds_read_b64_tr_b16 {v(wb(b,t)+2*h,2)}, {v(vWR+4*j+t)} offset:{(c%4)*16384 + h*1024}", "rd"))
        return L
    def cs_dots(b, nt):
        return [f"v_dot2c_f32_bf16 {v(vCS+t)}, {s(sOnes)}, {v(wb(b,t)+k)}" for k in range(4) for t in range(nt)]
    def x_dots(c):
        L = []
        for j in range(4):
            for k in range(4):
                L.append(f"v_dot2c_f32_bf16 {v(vSX)}, {s(sOnes)}, {v(xf(c,j)+k)}")
                L.append(f"v_dot2c_f32_bf16 {v(vSXX)}, {v(xf(c,j)+k)}, {v(xf(c,j)+k)}")
        return L
    def cs_publish(nt):
        L = [f"v_lshlrev_b32 {v(T[6])}, 4, {v(vL)}", f"s_lshl_b32 {s(sT0)}, {s(sWave)}, 2", f"s_add_u32 {s(sT0)}, {s(sT0)}, {LEX}",
             f"v_add_u32 {v(T[5])}, {s(sT0)}, {v(T[6])}", f"v_add_u32 {v(T[6])}, {LEX}, {v(T[6])}"]
        for t in range(nt):
            L += [f"v_cvt_pk_bf16_f32 {v(T[0])}, {v(vCS+t)}, {v(vCS+t)}",
                  f"v_and_b32 {v(T[0])}, 0xffff0000, {v(T[0])}",
                  f"v_sub_f32 {v(T[1])}, {v(vCS+t)}, {v(T[0])}",
                  f"v_cvt_pk_bf16_f32 {v(T[1])}, {v(T[0])}, {v(T[1])}",
                  (f"ds_write_b32 {v(T[5])}, {v(T[1])} offset:{t*1024}", "cs"),
                  f"v_mov_b32 {v(vCS+t)}, 0"]
        return L

    A.wait_vm("q0")
    A("s_barrier")
    emit(reads_p1(0, 0, 0))
    step = 0
    for c in range(7):
        xd = x_dots(c)
        for j in range(4):
            b = step & 1
            A("s_waitcnt lgkmcnt(0)")
            fill = []
            if j == 3:
                if c < 6:
                    n = min(A.vmcnt_for(f"x{c+1}"), A.vmcnt_for(f"q{c+1}"))
                else:
                    n = A.vmcnt_for("w0")
                A(f"s_waitcnt vmcnt({n})")
                A("s_barrier")
                if c == 3:
                    for jj in range(4): A(f"v_add_u32 {v(vXR+jj)}, 0x10000, {v(vXR+jj)}")
                fill += reads_p1(c+1, 0, b ^ 1) if c < 6 else []
                if c + 4 <= 6: fill += dma_q(c + 4)
                fill += dma_w(c)
            else:
                fill += reads_p1(c, j+1, b ^ 1)
            if j == 0: fill += cs_dots(b, 3)
            elif j == 1: fill += xd[:12]
            elif j == 2: fill += xd[12:24] + (cs_publish(3) if c == 6 else [])
            else: fill += xd[24:]
            cz = (step == 0)
            m = []
            for t in range(3):
                D = v(ACC+16*t, 16); C = "0" if cz else D
                if t < 2: m.append(f"{MFMA} {D}, {v(wb(b,t),4)}, {v(xf(c,j),4)}, {C}")
                else:     m.append(f"{MFMA} {D}, {v(xf(c,j),4)}, {v(wb(b,t),4)}, {C}")
            interleave(A, m, fill)
            step += 1
    for t in range(3):
        A(f"ds_read_b128 {v(wb(0,t),4)}, {v(T[6])} offset:{t*1024}", tag="rd")
    A("s_nop 1")
    A(f"v_mov_b32 {v(T[0])}, {v(vSX)}")
    A(f"v_mov_b32 {v(T[1])}, {v(vSXX)}")
    A("s_nop 1")
    A(f"v_permlane32_swap_b32 {v(vSX)}, {v(T[0])}")
    A(f"v_permlane32_swap_b32 {v(vSXX)}, {v(T[1])}")
    A("s_nop 1")
    A(f"v_add_f32 {v(vSX)}, {v(vSX)}, {v(T[0])}")
    A(f"v_add_f32 {v(vSXX)}, {v(vSXX)}, {v(T[1])}")
    A(f"v_mul_f32 {v(vSX)}, {f32(1/448)}, {v(vSX)}")
    A(f"v_mul_f32 {v(vSXX)}, {f32(1/448)}, {v(vSXX)}")
    A(f"v_fma_f32 {v(vSXX)}, -{v(vSX)}, {v(vSX)}, {v(vSXX)}")
    A(f"v_max_f32 {v(vSXX)}, 0, {v(vSXX)}")
    vMN = 10
    A(f"v_cvt_pk_bf16_f32 {v(vMN)}, -{v(vSX)}, -{v(vSX)}")
    A(f"v_cvt_pk_bf16_f32 {v(T[0])}, {v(vSXX)}, {v(vSXX)}")
    A(f"v_and_b32 {v(T[0])}, 0xffff0000, {v(T[0])}")
    A(f"v_add_f32 {v(T[0])}, {f32(1e-5)}, {v(T[0])}")
    A(f"v_cvt_pk_bf16_f32 {v(T[0])}, {v(T[0])}, {v(T[0])}")
    A(f"v_and_b32 {v(T[0])}, 0xffff0000, {v(T[0])}")
    A(f"v_sqrt_f32 {v(T[0])}, {v(T[0])}")
    A(f"v_mov_b32 {v(vMN+1)}, {v(vMN)}")
    A(f"v_cvt_pk_bf16_f32 {v(T[0])}, {v(T[0])}, {v(T[0])}")
    A(f"v_and_b32 {v(T[0])}, 0xffff0000, {v(T[0])}")
    vR = vSXX
    A(f"v_rcp_f32 {v(vR)}, {v(T[0])}")
    A(f"v_mov_b32 {v(vMN+2)}, {v(vMN)}")
    A(f"v_mov_b32 {v(vMN+3)}, {v(vMN)}")
    A(f"s_lshl_b32 {s(sT0)}, {s(sWave)}, 8")
    A(f"s_add_u32 {s(sT0)}, {s(sT0)}, {LEX+4096}")
    A(f"v_lshl_add_u32 {v(T[1])}, {v(vL32)}, 2, {s(sT0)}")
    A(f"v_lshl_add_u32 {v(T[2])}, {v(vG)}, 4, {s(sT0)}")
    A(f"ds_write_b32 {v(T[1])}, {v(vR)}", tag="rw")
    A("s_waitcnt lgkmcnt(0)")
    RV = wb(1, 0)
    for q in range(4):
        A(f"ds_read_b128 {v(RV+4*q,4)}, {v(T[2])} offset:{32*q}", tag="rv")
    for t in range(3):
        D = v(ACC+16*t, 16)
        if t < 2: A(f"{MFMA} {D}, {v(wb(0,t),4)}, {v(vMN,4)}, {D}")
        else:     A(f"{MFMA} {D}, {v(vMN,4)}, {v(wb(0,t),4)}, {D}")
    A(f"s_lshl_b32 {s(sT0)}, {s(sTT)}, 7")
    A(f"s_add_u32 {s(sT0)}, {s(sT0)}, {WS_RS}")
    A(f"v_lshl_add_u32 {v(T[1])}, {v(vL32)}, 2, {s(sT0)}")
    A(f"s_cmp_lg_u32 {s(sCB)}, 0")
    A("s_cbranch_scc1 K1_NORS")
    A(f"buffer_store_dword {v(vR)}, {v(T[1])}, {s(rW,4)}, 0 offen")
    A.label("K1_NORS")
    A.vm = A.vm[:-1]
    A(f"v_mul_f32 {v(T[0])}, {s(sQS)}, {v(vR)}")
    A("s_nop 7")
    for t in range(2):
        for q in range(4):
            r0 = ACC + 16*t + 4*q
            for k in range(4):
                A(f"v_mul_f32 {v(r0+k)}, {v(T[0])}, {v(r0+k)}")
            A(f"v_cvt_pk_bf16_f32 {v(r0)}, {v(r0)}, {v(r0+1)}")
            A(f"v_cvt_pk_bf16_f32 {v(r0+1)}, {v(r0+2)}, {v(r0+3)}")
            A(f"buffer_store_dwordx2 {v(r0,2)}, {v(vQKA+4*t+q)}, {s(rW,4)}, 0 offen", tag="st")
    A("s_waitcnt lgkmcnt(0)")
    r0 = ACC + 32
    for k in range(16):
        A(f"v_mul_f32 {v(r0+k)}, {v(RV+k)}, {v(r0+k)}")
    for k in range(8):
        A(f"v_cvt_pk_bf16_f32 {v(r0+k)}, {v(r0+2*k)}, {v(r0+2*k+1)}")
    for e in range(2):
        A(f"buffer_store_dwordx4 {v(r0+4*e,4)}, {v(vVA)}, {s(rW,4)}, 0 offen offset:{2048+1024*e}", tag="st")
    emit(reads_p2(0, 0, 0))
    step = 0
    for c in range(7):
        for j in range(4):
            b = step & 1
            A("s_waitcnt lgkmcnt(0)")
            fill = []
            if j == 3:
                if c < 6:
                    A.wait_vm(f"w{c+1}")
                A("s_barrier")
                if c == 3:
                    for jj in range(16): A(f"v_add_u32 {v(vWR+jj)}, 0x10000, {v(vWR+jj)}")
                fill += reads_p2(c+1, 0, b ^ 1) if c < 6 else []
            else:
                fill += reads_p2(c, j+1, b ^ 1)
            if j == 0: fill += cs_dots(b, 4)
            if j == 2 and c == 6: fill += cs_publish(4)
            cz = (step == 0)
            m = []
            for t in range(4):
                D = v(ACC+16*t, 16); C = "0" if cz else D
                m.append(f"{MFMA} {D}, {v(wb(b,t),4)}, {v(xf(c,j),4)}, {C}")
            interleave(A, m, fill)
            step += 1
    for t in range(4):
        A(f"ds_read_b128 {v(wb(0,t),4)}, {v(T[6])} offset:{t*1024}", tag="rd")
    A(f"s_mul_i32 {s(sT0)}, {s(sTT)}, {AF_TT}")
    A(f"s_lshl_b32 {s(sT1)}, {s(sCB)}, 13")
    A(f"s_add_u32 {s(sT0)}, {s(sT0)}, {s(sT1)}")
    A(f"s_add_u32 {s(sT0)}, {s(sT0)}, {WS_AF}")
    A(f"v_lshl_add_u32 {v(T[0])}, {v(vL)}, 4, {s(sT0)}")
    A(f"v_add_u32 {v(T[1])}, 4096, {v(T[0])}")
    A("s_waitcnt lgkmcnt(0)")
    for t in range(4):
        D = v(ACC+16*t, 16)
        A(f"{MFMA} {D}, {v(wb(0,t),4)}, {v(vMN,4)}, {D}")
    A("s_nop 8")
    for t in range(4):
        r0 = ACC + 16*t
        for k in range(8):
            A(f"v_cvt_pk_bf16_f32 {v(r0+k)}, {v(r0+2*k)}, {v(r0+2*k+1)}")
            A(f"v_pk_max_i16 {v(r0+k)}, {v(r0+k)}, 0")
        for e in range(2):
            A(f"buffer_store_dwordx4 {v(r0+4*e,4)}, {v(T[t//2])}, {s(rW,4)}, 0 offen offset:{(t%2)*2048+1024*e}", tag="st")
    A("s_endpgm")

    A.label("K1_RELAY")
    sU = sRB
    A(f"s_lshl_b32 {s(sT0)}, {s(sWave)}, 5")
    A(f"s_add_u32 {s(sU)}, s2, {s(sT0)}")
    A(f"s_sub_u32 {s(sU)}, {s(sU)}, 224")
    A(f"s_cmp_ge_u32 {s(sU)}, 72")
    A("s_cbranch_scc1 K1_END")
    A("s_waitcnt lgkmcnt(0)")
    srd(A, rW, sWS, WS_SIZE)
    A(f"s_cmp_ge_u32 {s(sU)}, 56")
    A(f"s_cselect_b32 {s(rX)}, {s(sWO)}, {s(sW2)}")
    A(f"s_cselect_b32 {s(rX+1)}, {s(sWO+1)}, {s(sW2+1)}")
    A(f"s_cselect_b32 {s(rX+2)}, {WO_BYTES}, {W2_BYTES}") if False else None
    A(f"s_mov_b32 {s(sT0)}, {WO_BYTES}")
    A(f"s_mov_b32 {s(sT1)}, {W2_BYTES}")
    A(f"s_cselect_b32 {s(rX+2)}, {s(sT0)}, {s(sT1)}")
    A(f"s_mov_b32 {s(rX+3)}, 0x00020000")
    A(f"s_cselect_b32 {s(sOnes)}, 0, -1")
    A(f"s_cselect_b32 {s(sQS)}, {2*896}, 0")
    A(f"s_mul_i32 {s(sT0)}, {s(sU)}, {32*896}")
    A(f"s_sub_u32 {s(sT1)}, {s(sU)}, 56")
    A(f"s_mul_i32 {s(sT1)}, {s(sT1)}, {28*896}")
    A(f"s_cmp_ge_u32 {s(sU)}, 56")
    A(f"s_cselect_b32 {s(sOff)}, {s(sT1)}, {s(sT0)}")
    A(f"s_mul_i32 {s(sM0x)}, {s(sWave)}, 28672")
    A(f"v_lshlrev_b32 {v(T[0])}, 4, {v(vL)}")
    for i in range(7):
        A(f"s_add_u32 m0, {s(sM0x)}, {4096*i}")
        A("s_nop 0")
        for k in range(4):
            A(f"buffer_load_dwordx4 {v(T[0])}, {s(rX,4)}, {s(sOff)} offen offset:{1024*k} lds")
        A(f"s_add_u32 {s(sOff)}, {s(sOff)}, 4096")
    A(f"v_bfe_u32 {v(T[1])}, {v(vL)}, 2, 2")
    A(f"v_lshl_add_u32 {v(T[1])}, {v(vG)}, 2, {v(T[1])}")
    A(f"v_mul_u32_u24 {v(T[1])}, 896, {v(T[1])}")
    A(f"v_and_b32 {v(T[2])}, 1, {v(vL)}")
    A(f"v_lshl_add_u32 {v(T[1])}, {v(T[2])}, 5, {v(T[1])}")
    A(f"v_bfe_u32 {v(T[2])}, {v(vL)}, 1, 1")
    A(f"v_lshl_add_u32 {v(T[1])}, {v(T[2])}, 3, {v(T[1])}")
    A(f"v_bfe_u32 {v(T[2])}, {v(vL)}, 4, 1")
    A(f"v_lshl_add_u32 {v(T[1])}, {v(T[2])}, 4, {v(T[1])}")
    A(f"v_add_u32 {v(T[1])}, {s(sM0x)}, {v(T[1])}")
    A(f"v_mul_lo_u32 {v(T[2])}, {v(vG)}, {s(sQS)}")
    A(f"v_sub_u32 {v(T[2])}, {v(T[1])}, {v(T[2])}")
    A(f"s_lshl_b32 {s(sT0)}, {s(sU)}, 11")
    A(f"s_add_u32 {s(sT0)}, {s(sT0)}, {WS_WF}")
    A(f"v_add_u32 {v(T[0])}, {s(sT0)}, {v(T[0])}")
    A("s_waitcnt vmcnt(0)")
    for nt in range(14):
        r0 = 16 + 8*nt
        for e in range(2):
            for h in range(2):
                ad = T[2] if (e == 1 and h == 1) else T[1]
                A(f"ds_read_b64_tr_b16 {v(r0+4*e+2*h,2)}, {v(ad)} offset:{(16*e+8*h)*896 + nt*64}")
        if nt % 3 == 2: A("s_waitcnt lgkmcnt(0)")
    A("s_waitcnt lgkmcnt(0)")
    A(f"s_mov_b32 {s(sOff)}, 0")
    for nt in range(14):
        r0 = 16 + 8*nt
        A(f"v_and_b32 {v(r0+7)}, {s(sOnes)}, {v(r0+7)}")
        for e in range(2):
            A(f"buffer_store_dwordx4 {v(r0+4*e,4)}, {v(T[0])}, {s(rW,4)}, {s(sOff)} offen offset:{1024*e}")
        A(f"s_add_u32 {s(sOff)}, {s(sOff)}, {AF_TT}")
    A.label("K1_END")
    A("s_endpgm")
    return A
```

```python
from common import *
BIAS = 64.0

def gen_k2():
    A = Asm()
    sWS = 20
    rW, rKV = 24, 28
    sWave, sH, sQB, sT0, sT1, sOff, sCnt = 40, 41, 42, 43, 44, 45, 46
    sEx = 48
    vL, vL32, vG = 0, 1, 2
    T = [3, 4, 5, 6, 7, 8, 9, 10, 11]
    vKA, vOA = 12, 13
    S = [16, 32]; P = [48, 56]; O = 64; Q = 128; KV = 160
    def q(j, e): return Q + 8*j + 4*e
    def kf(kt, e): return KV + 16*(kt % 4) + 4*e
    def vf(kt, e): return KV + 16*(kt % 4) + 8 + 4*e

    A("s_load_dwordx2 s[20:21], s[0:1], 64")
    A("s_cmp_ge_u32 s2, 256")
    A("s_cbranch_scc1 K2_END")
    A(f"v_lshrrev_b32 {v(T[0])}, 6, v0")
    A(f"v_and_b32 {v(vL)}, 63, v0")
    A(f"v_readfirstlane_b32 {s(sWave)}, {v(T[0])}")
    A(f"v_and_b32 {v(vL32)}, 31, {v(vL)}")
    A(f"v_lshrrev_b32 {v(vG)}, 5, {v(vL)}")
    A(f"s_and_b32 {s(sH)}, s2, 15")
    A(f"s_lshr_b32 {s(sQB)}, s2, 4")
    A(f"s_lshl_b32 {s(sT0)}, {s(sH)}, 17")
    A(f"s_lshl_b32 {s(sT1)}, {s(sQB)}, 13")
    A(f"s_add_u32 {s(sT0)}, {s(sT0)}, {s(sT1)}")
    if WS_QF: A(f"s_add_u32 {s(sT0)}, {s(sT0)}, {WS_QF}")
    A(f"v_lshl_add_u32 {v(T[0])}, {v(vL)}, 4, {s(sT0)}")
    A(f"v_add_u32 {v(T[1])}, 4096, {v(T[0])}")
    A(f"s_lshl_b32 {s(sT0)}, {s(sH)}, 18")
    A(f"s_lshl_b32 {s(sT1)}, {s(sWave)}, 16")
    A(f"s_add_u32 {s(sT0)}, {s(sT0)}, {s(sT1)}")
    A(f"s_add_u32 {s(sT0)}, {s(sT0)}, {WS_KV}")
    A(f"v_lshl_add_u32 {v(vKA)}, {v(vL)}, 4, {s(sT0)}")
    A("s_waitcnt lgkmcnt(0)")
    srd(A, rW, sWS, WS_SIZE)
    srd(A, rKV, sWS, WS_SIZE)
    A(f"s_add_u32 {s(rKV+2)}, {s(sT0)}, 65536")
    A(f"s_lshl_b32 {s(sT1)}, {s(sWave)}, 11")
    QW = 224
    for e in range(2):
        A(f"buffer_load_dwordx4 {v(QW+4*e,4)}, {v(T[0])}, {s(rW,4)}, {s(sT1)} offen offset:{1024*e}", tag="qw")
    for e in range(2):
        A(f"buffer_load_dwordx4 {v(kf(0,e),4)}, {v(vKA)}, {s(rKV,4)}, 0 offen offset:{1024*e}", tag="k0")
    for j in range(4):
        for e in range(2):
            A(f"buffer_load_dwordx4 {v(q(j,e),4)}, {v(T[j//2])}, {s(rW,4)}, 0 offen offset:{(j%2)*2048+1024*e}", tag="q")
    for e in range(2):
        A(f"buffer_load_dwordx4 {v(vf(0,e),4)}, {v(vKA)}, {s(rKV,4)}, 0 offen offset:{2048+1024*e}", tag="v0")
    A(f"s_mov_b32 {s(sOff)}, 4096")
    for kt in (1, 2):
        for i in range(4):
            A(f"buffer_load_dwordx4 {v(KV+16*kt+4*i,4)}, {v(vKA)}, {s(rKV,4)}, {s(sOff)} offen offset:{1024*i}", tag=("k" if i < 2 else "v") + str(kt))
        A(f"s_add_u32 {s(sOff)}, {s(sOff)}, 4096")
    A(f"s_lshl_b32 {s(sT0)}, {s(sQB)}, 2")
    A(f"s_add_u32 {s(sT0)}, {s(sT0)}, {s(sWave)}")
    A(f"s_mul_i32 {s(sT0)}, {s(sT0)}, {AF_TT}")
    A(f"s_lshl_b32 {s(sT1)}, {s(sH)}, 11")
    A(f"s_add_u32 {s(sT0)}, {s(sT0)}, {s(sT1)}")
    A(f"s_add_u32 {s(sT0)}, {s(sT0)}, {WS_AF + 112*1024}")
    A(f"v_lshl_add_u32 {v(vOA)}, {v(vL)}, 4, {s(sT0)}")
    for r in range(64): A(f"v_mov_b32 {v(O+r)}, 0")
    for r in range(8): A(f"v_mov_b32 {v(P[1]+r)}, 0")
    A(f"s_mov_b32 {s(sEx)}, 0")
    A(f"s_mov_b32 {s(sEx+1)}, -1")

    def max_tree(Sb, out, first):
        L = []
        if first:
            L.append(f"v_max3_f32 {v(out)}, {v(Sb)}, {v(Sb+1)}, {v(Sb+2)}")
            for k in range(3, 15, 2): L.append(f"v_max3_f32 {v(out)}, {v(out)}, {v(Sb+k)}, {v(Sb+k+1)}")
            L.append(f"v_max_f32 {v(out)}, {v(out)}, {v(Sb+15)}")
        else:
            for k in range(0, 16, 2): L.append(f"v_max3_f32 {v(out)}, {v(out)}, {v(Sb+k)}, {v(Sb+k+1)}")
        return L
    def split3(m, bias, o0, o1, t0, t1):
        A(f"v_mov_b32 {v(t0)}, {v(m)}")
        A("s_nop 1")
        A(f"v_permlane32_swap_b32 {v(m)}, {v(t0)}")
        A("s_nop 1")
        A(f"v_max_f32 {v(m)}, {v(m)}, {v(t0)}")
        A(f"v_sub_f32 {v(m)}, {f32(-bias)}, {v(m)}")
        A(f"v_and_b32 {v(t0)}, 0xffff0000, {v(m)}")
        A(f"v_sub_f32 {v(m)}, {v(m)}, {v(t0)}")
        A(f"v_and_b32 {v(t1)}, 0xffff0000, {v(m)}")
        A(f"v_sub_f32 {v(m)}, {v(m)}, {v(t1)}")
        A(f"v_lshrrev_b32 {v(t0)}, 16, {v(t0)}")
        A(f"v_or_b32 {v(o0)}, {v(t0)}, {v(t1)}")
        A(f"v_lshrrev_b32 {v(o1)}, 16, {v(m)}")

    A.wait_vm("qw")
    A(f"s_mov_b64 exec, {s(sEx,2)}")
    A(f"v_mov_b32 {v(QW+6)}, 0")
    A(f"v_mov_b32 {v(QW+7)}, 0")
    A("s_mov_b64 exec, -1")
    A.wait_vm("k0")
    A(f"{MFMA} {v(S[0],16)}, {v(kf(0,0),4)}, {v(QW,4)}, 0")
    A(f"{MFMA} {v(S[0],16)}, {v(kf(0,1),4)}, {v(QW+4,4)}, {v(S[0],16)}")
    A(f"s_lshl_b32 {s(sT0)}, {s(sWave)}, 8")
    A(f"v_lshlrev_b32 {v(T[5])}, 3, {v(vL32)}")
    A(f"v_add_u32 {v(T[4])}, {s(sT0)}, {v(T[5])}")
    A("s_nop 8")
    for l in max_tree(S[0], T[0], True): A(l)
    split3(T[0], BIAS, T[7] - 0, T[8], T[1], T[2]) if False else None
    split3(T[0], BIAS, 10, 11, T[1], T[2])
    A(f"ds_write_b64 {v(T[4])}, {v(10,2)}")
    A("s_waitcnt lgkmcnt(0)")
    A.wait_vm("q")
    A("s_barrier")
    A(f"s_mov_b64 exec, {s(sEx,2)}")
    for j in range(4):
        A(f"ds_read_b64 {v(q(j,1)+2,2)}, {v(T[5])} offset:{256*j}")
    A("s_mov_b64 exec, -1")
    A("s_waitcnt lgkmcnt(0)")
    A(f"{MFMA} {v(S[0],16)}, {v(kf(0,0),4)}, {v(q(0,0),4)}, 0")
    A(f"{MFMA} {v(S[0],16)}, {v(kf(0,1),4)}, {v(q(0,1),4)}, {v(S[0],16)}")
    A(f"s_mov_b32 {s(sCnt)}, 4")
    for r in range(8): A(f"v_mov_b32 {v(vf(3,0)+r)}, 0")
    A("s_nop 3")
    A(".p2align 6")
    A.label("K2_LOOP")
    for kt in range(4):
        for j in range(4):
            t = 4*kt + j
            Sc, Sn, Pc, Pp = S[t % 2], S[(t+1) % 2], P[t % 2], P[(t+1) % 2]
            ktn, jn = (t+1) // 4, (t+1) % 4
            ktp, jp = (t-1) // 4, (t-1) % 4
            def grp(g):
                L = [f"v_exp_f32 {v(Sc+4*g+k)}, {v(Sc+4*g+k)}" for k in range(4)]
                L += [f"v_cvt_pk_bf16_f32 {v(Pc+2*g+k)}, {v(Sc+4*g+2*k)}, {v(Sc+4*g+2*k+1)}" for k in range(2)]
                return L
            A(f"{MFMA} {v(Sn,16)}, {v(kf(ktn,0),4)}, {v(q(jn,0),4)}, 0")
            for l in grp(0): A(l)
            A(f"{MFMA} {v(Sn,16)}, {v(kf(ktn,1),4)}, {v(q(jn,1),4)}, {v(Sn,16)}")
            if j == 1: A(f"s_waitcnt vmcnt({8 + 1})")
            if j == 2: A(f"s_waitcnt vmcnt({2 + 4 + 2})")
            if j == 3: A(f"s_sub_u32 {s(sCnt)}, {s(sCnt)}, 1") if kt == 3 else None
            for l in grp(1): A(l)
            A(f"{MFMA} {v(O+16*jp,16)}, {v(vf(ktp,0),4)}, {v(Pp,4)}, {v(O+16*jp,16)}")
            if j == 3 and kt == 3: A(f"s_cmp_lg_u32 {s(sCnt)}, 0")
            for l in grp(2): A(l)
            A(f"{MFMA} {v(O+16*jp,16)}, {v(vf(ktp,1),4)}, {v(Pp+4,4)}, {v(O+16*jp,16)}")
            A(f"buffer_load_dwordx4 {v(KV+16*((kt+3)%4)+4*j,4)}, {v(vKA)}, {s(rKV,4)}, {s(sOff)} offen offset:{1024*j}")
            for l in grp(3): A(l)
            if j == 3: A(f"v_add_u32 {v(vKA)}, 4096, {v(vKA)}")
    A("s_cbranch_scc1 K2_LOOP")
    A("s_nop 0")
    A(f"{MFMA} {v(O+48,16)}, {v(vf(3,0),4)}, {v(P[1],4)}, {v(O+48,16)}")
    A(f"{MFMA} {v(O+48,16)}, {v(vf(3,1),4)}, {v(P[1]+4,4)}, {v(O+48,16)}")
    LM = 4096
    A(f"s_lshl_b32 {s(sT0)}, {s(sWave)}, 12")
    A(f"s_add_u32 {s(sT0)}, {s(sT0)}, {LM}")
    A(f"v_lshl_add_u32 {v(T[0])}, {v(vL)}, 4, {s(sT0)}")
    A(f"s_lshl_b32 {s(sT0)}, {s(sWave)}, 14")
    A(f"s_add_u32 {s(sT0)}, {s(sT0)}, {LM}")
    A(f"v_lshl_add_u32 {v(T[1])}, {v(vL)}, 4, {s(sT0)}")
    A("s_waitcnt vmcnt(0)")
    for j in range(4):
        if j == 3: A("s_nop 3")
        for qq in range(4):
            A(f"ds_write_b128 {v(T[0])}, {v(O+16*j+4*qq,4)} offset:{j*16384+qq*1024}")
        A("s_waitcnt lgkmcnt(4)") if j >= 2 else None
    A("s_waitcnt lgkmcnt(0)")
    A("s_barrier")
    for w in range(4):
        for qq in range(4):
            A(f"ds_read_b128 {v(O+16*w+4*qq,4)}, {v(T[1])} offset:{w*4096+qq*1024}")
        if w == 2: A("s_waitcnt lgkmcnt(4)")
        if w == 2:
            for r in range(16): A(f"v_add_f32 {v(O+r)}, {v(O+r)}, {v(O+16+r)}")
    A("s_waitcnt lgkmcnt(0)")
    for r in range(16): A(f"v_add_f32 {v(O+32+r)}, {v(O+32+r)}, {v(O+48+r)}")
    for r in range(16): A(f"v_add_f32 {v(O+r)}, {v(O+r)}, {v(O+32+r)}")
    A(f"v_add_f32 {v(T[2])}, |{v(O)}|, |{v(O+1)}|")
    for r in range(2, 16): A(f"v_add_f32 {v(T[2])}, {v(T[2])}, |{v(O+r)}|")
    A(f"v_cmp_nlt_f32 vcc, {v(T[2])}, {v(T[2])}") if False else None
    A(f"v_mov_b32 {v(T[3])}, {f32(2.0**120)}")
    A(f"v_cmp_nlt_f32 vcc, {v(T[2])}, {v(T[3])}")
    A("s_cbranch_vccnz K2_SLOW")
    A.label("K2_FIN")
    A(f"v_rcp_f32 {v(T[2])}, {v(O+15)}")
    A("s_nop 0")
    for r in range(16): A(f"v_mul_f32 {v(O+r)}, {v(T[2])}, {v(O+r)}")
    for k in range(8): A(f"v_cvt_pk_bf16_f32 {v(O+k)}, {v(O+2*k)}, {v(O+2*k+1)}")
    for e in range(2):
        A(f"buffer_store_dwordx4 {v(O+4*e,4)}, {v(vOA)}, {s(rW,4)}, 0 offen offset:{1024*e}")
    A.label("K2_END")
    A("s_endpgm")

    A.label("K2_SLOW")
    A(f"s_lshl_b32 {s(sT0)}, {s(sH)}, 18")
    A(f"s_add_u32 {s(sT0)}, {s(sT0)}, {WS_KV}")
    A(f"v_lshl_add_u32 {v(vKA)}, {v(vL)}, 4, {s(sT0)}")
    A(f"v_mov_b32 {v(T[0])}, 0xff800000")
    A(f"s_mov_b32 {s(sOff)}, 0")
    A.label("K2_SLOW_MAX")
    for e in range(2):
        A(f"buffer_load_dwordx4 {v(KV+4*e,4)}, {v(vKA)}, {s(rW,4)}, {s(sOff)} offen offset:{1024*e}")
    A("s_waitcnt vmcnt(0)")
    A(f"{MFMA} {v(S[0],16)}, {v(KV,4)}, {v(QW,4)}, 0")
    A(f"{MFMA} {v(S[0],16)}, {v(KV+4,4)}, {v(QW+4,4)}, {v(S[0],16)}")
    A(f"s_add_u32 {s(sOff)}, {s(sOff)}, 4096")
    A("s_nop 11")
    for l in max_tree(S[0], T[0], False): A(l)
    A(f"s_cmp_lt_u32 {s(sOff)}, 262144")
    A("s_cbranch_scc1 K2_SLOW_MAX")
    split3(T[0], 0.0, 10, 11, T[1], T[2])
    A(f"s_mov_b64 exec, {s(sEx,2)}")
    A(f"v_mov_b32 {v(QW+6)}, {v(10)}")
    A(f"v_mov_b32 {v(QW+7)}, {v(11)}")
    A("s_mov_b64 exec, -1")
    for r in range(16): A(f"v_mov_b32 {v(O+r)}, 0")
    A(f"s_mov_b32 {s(sOff)}, 0")
    A.label("K2_SLOW_PV")
    for e in range(4):
        A(f"buffer_load_dwordx4 {v(KV+4*e,4)}, {v(vKA)}, {s(rW,4)}, {s(sOff)} offen offset:{1024*e}")
    A("s_waitcnt vmcnt(0)")
    A(f"{MFMA} {v(S[0],16)}, {v(KV,4)}, {v(QW,4)}, 0")
    A(f"{MFMA} {v(S[0],16)}, {v(KV+4,4)}, {v(QW+4,4)}, {v(S[0],16)}")
    A(f"s_add_u32 {s(sOff)}, {s(sOff)}, 4096")
    A("s_nop 11")
    for k in range(16): A(f"v_exp_f32 {v(S[0]+k)}, {v(S[0]+k)}")
    A("s_nop 0")
    for k in range(8): A(f"v_cvt_pk_bf16_f32 {v(P[0]+k)}, {v(S[0]+2*k)}, {v(S[0]+2*k+1)}")
    A("s_nop 1")
    A(f"{MFMA} {v(O,16)}, {v(KV+8,4)}, {v(P[0],4)}, {v(O,16)}")
    A(f"{MFMA} {v(O,16)}, {v(KV+12,4)}, {v(P[0]+4,4)}, {v(O,16)}")
    A(f"s_cmp_lt_u32 {s(sOff)}, 262144")
    A("s_cbranch_scc1 K2_SLOW_PV")
    A("s_nop 11")
    A("s_branch K2_FIN")
    return A
```

```python
from common import *

def gen_k3():
    A = Asm()
    sX, sOUT, sWS = 4, 16, 20
    rW, rX, rO = 24, 28, 32
    sWave, sTP, sNP, sT0, sT1, sOff = 40, 41, 42, 43, 44, 45
    vL, vL32, vG = 0, 1, 2
    T = [3, 4, 5, 6, 7, 8, 9]
    vA = [10, 11]; vW = [12, 13]; vR = [14, 15]
    ACC = 16
    XR = 80
    NR = 12
    def ring(k, i): return a(16*(k % NR) + 4*i, 4)
    A("s_load_dwordx16 s[4:19], s[0:1], 0")
    A("s_load_dwordx2 s[20:21], s[0:1], 64")
    A("s_cmp_ge_u32 s2, 224")
    A("s_cbranch_scc1 K3_END")
    A(f"v_lshrrev_b32 {v(T[0])}, 6, v0")
    A(f"v_and_b32 {v(vL)}, 63, v0")
    A(f"v_readfirstlane_b32 {s(sWave)}, {v(T[0])}")
    A(f"v_and_b32 {v(vL32)}, 31, {v(vL)}")
    A(f"v_lshrrev_b32 {v(vG)}, 5, {v(vL)}")
    A(f"s_and_b32 {s(sT0)}, s2, 7")
    A(f"s_lshl_b32 {s(sT0)}, {s(sT0)}, 2")
    A(f"s_bfe_u32 {s(sT1)}, s2, 0x20003")
    A(f"s_add_u32 {s(sTP)}, {s(sT0)}, {s(sT1)}")
    A(f"s_lshr_b32 {s(sNP)}, s2, 5")
    A(f"s_mul_i32 {s(sT0)}, {s(sTP)}, {2*AF_TT}")
    A(f"s_add_u32 {s(sT0)}, {s(sT0)}, {WS_AF}")
    A(f"v_lshl_add_u32 {v(vA[0])}, {v(vL)}, 4, {s(sT0)}")
    A(f"v_add_u32 {v(vA[1])}, {AF_TT}, {v(vA[0])}")
    A(f"s_mul_i32 {s(sT0)}, {s(sNP)}, {2*AF_TT}")
    A(f"s_add_u32 {s(sT0)}, {s(sT0)}, {WS_WF}")
    A(f"v_lshl_add_u32 {v(vW[0])}, {v(vL)}, 4, {s(sT0)}")
    A(f"v_add_u32 {v(vW[1])}, {AF_TT}, {v(vW[0])}")
    sH0, sO0 = 46, 47
    A(f"s_mul_i32 {s(sH0)}, {s(sWave)}, {28*1024}")
    A(f"s_lshl_b32 {s(sO0)}, {s(sWave)}, 13")
    A(f"s_add_u32 {s(sO0)}, {s(sO0)}, {112*1024}")
    A("s_waitcnt lgkmcnt(0)")
    srd(A, rW, sWS, WS_SIZE); srd(A, rX, sX, X_BYTES); srd(A, rO, sOUT, X_BYTES)
    def loads(k):
        L = []
        base, kk = (sH0, k) if k < 28 else (sO0, k - 28)
        if kk % 4 == 0:
            L.append(f"s_add_u32 {s(sOff)}, {s(base)}, {kk*1024}")
        for i, ad in enumerate((vA[0], vA[1], vW[0], vW[1])):
            L.append((f"buffer_load_dwordx4 {ring(k,i)}, {v(ad)}, {s(rW,4)}, {s(sOff)} offen offset:{(kk%4)*1024}", f"k{k}"))
        return L
    A(f"s_lshl_b32 {s(sT0)}, {s(sTP)}, 8")
    A(f"s_add_u32 {s(sT0)}, {s(sT0)}, {WS_RS}")
    A(f"v_lshl_add_u32 {v(T[0])}, {v(vL32)}, 2, {s(sT0)}")
    for k in range(NR - 1): interleave(A, loads(k), [])
    A(f"buffer_load_dword {v(vR[0])}, {v(T[0])}, {s(rW,4)}, 0 offen", tag="r")
    A(f"buffer_load_dword {v(vR[1])}, {v(T[0])}, {s(rW,4)}, 0 offen offset:128", tag="r")
    A(f"s_lshr_b32 {s(sT0)}, {s(sWave)}, 1")
    A(f"s_lshl_b32 {s(sT0)}, {s(sT0)}, 5")
    A(f"s_lshl_b32 {s(sT1)}, {s(sTP)}, 6")
    A(f"s_add_u32 {s(sT0)}, {s(sT0)}, {s(sT1)}")
    A(f"v_add_u32 {v(T[1])}, {s(sT0)}, {v(vL32)}")
    A(f"v_mul_u32_u24 {v(T[1])}, 896, {v(T[1])}")
    A(f"v_lshl_add_u32 {v(T[1])}, {v(vG)}, 5, {v(T[1])}")
    A(f"s_and_b32 {s(sT0)}, {s(sWave)}, 1")
    A(f"s_lshl_b32 {s(sT0)}, {s(sT0)}, 6")
    A(f"s_lshl_b32 {s(sT1)}, {s(sNP)}, 7")
    A(f"s_add_u32 {s(sT0)}, {s(sT0)}, {s(sT1)}")
    A(f"v_add_u32 {v(T[1])}, {s(sT0)}, {v(T[1])}")
    A(f"buffer_load_dwordx4 {v(XR,4)}, {v(T[1])}, {s(rX,4)}, 0 offen", tag="x")
    A(f"buffer_load_dwordx4 {v(XR+4,4)}, {v(T[1])}, {s(rX,4)}, 0 offen offset:16", tag="x")
    for k in range(36):
        if k == 28:
            A("s_nop 11")
            for tt in range(2):
                for r in range(32):
                    A(f"v_mul_f32 {v(ACC+32*tt+r)}, {v(vR[tt])}, {v(ACC+32*tt+r)}")
            A("s_nop 1")
        A.wait_vm(f"k{k}")
        m = []
        for tt in range(2):
            for nt in range(2):
                D = v(ACC+16*(2*tt+nt), 16)
                m.append(f"{MFMA} {D}, {ring(k,2+nt)}, {ring(k,tt)}, {'0' if k == 0 else D}")
        interleave(A, m, loads(k + NR - 1) if k + NR - 1 < 36 else [])
    A(f"s_lshl_b32 {s(sT0)}, {s(sWave)}, 12")
    A(f"v_lshl_add_u32 {v(T[2])}, {v(vL)}, 4, {s(sT0)}")
    A(f"s_lshl_b32 {s(sT0)}, {s(sWave)}, 14")
    A(f"v_lshl_add_u32 {v(T[3])}, {v(vL)}, 4, {s(sT0)}")
    A("s_nop 5")
    for j in range(4):
        for qq in range(4):
            A(f"ds_write_b128 {v(T[2])}, {v(ACC+16*j+4*qq,4)} offset:{j*16384+qq*1024}")
        if j >= 2: A("s_waitcnt lgkmcnt(4)")
    A("s_waitcnt lgkmcnt(0)")
    A("s_barrier")
    for w in range(4):
        for qq in range(4):
            A(f"ds_read_b128 {v(ACC+16*w+4*qq,4)}, {v(T[3])} offset:{w*4096+qq*1024}")
        if w == 2:
            A("s_waitcnt lgkmcnt(4)")
            for r in range(16): A(f"v_add_f32 {v(ACC+r)}, {v(ACC+r)}, {v(ACC+16+r)}")
    for k in range(8):
        A(f"v_lshlrev_b32 {v(ACC+16+2*k)}, 16, {v(XR+k)}")
        A(f"v_and_b32 {v(ACC+16+2*k+1)}, 0xffff0000, {v(XR+k)}")
    for r in range(16): A(f"v_add_f32 {v(ACC+r)}, {v(ACC+r)}, {v(ACC+16+r)}")
    A("s_waitcnt lgkmcnt(0)")
    for r in range(16): A(f"v_add_f32 {v(ACC+32+r)}, {v(ACC+32+r)}, {v(ACC+48+r)}")
    for r in range(16): A(f"v_add_f32 {v(ACC+r)}, {v(ACC+r)}, {v(ACC+32+r)}")
    for k in range(8): A(f"v_cvt_pk_bf16_f32 {v(ACC+k)}, {v(ACC+2*k)}, {v(ACC+2*k+1)}")
    A(f"buffer_store_dwordx4 {v(ACC,4)}, {v(T[1])}, {s(rO,4)}, 0 offen")
    A(f"buffer_store_dwordx4 {v(ACC+4,4)}, {v(T[1])}, {s(rO,4)}, 0 offen offset:16")
    A.label("K3_END")
    A("s_endpgm")
    return A
```

```python
import sys
from common import *
from k1 import gen_k1
from k2 import gen_k2
from k3 import gen_k3
def build(order, out):
    E = Asm(); E("s_endpgm")
    ks = {"k1_kernel": (gen_k1(), 256, 256, 256, 163840), "k2_kernel": (gen_k2(), 256, 256, 256, 4096 + 65536), "k3_kernel": (gen_k3(), 96 + 192, 96, 224, 65536),
          "e_kernel": (E, 8, 8, 256, 0)}
    t = HEADER
    for n in order:
        A, vg, ac, grid, lds = ks[n]
        t += f"; @launch kernel={n} grid=({grid},1,1) block=(256,1,1) lds={lds}\n"
    t += '.amdgcn_target "amdgcn-amd-amdhsa--gfx950"\n.text\n'
    used = list(dict.fromkeys(order))
    for n in used: t += kernel_text(n, ks[n][0])
    t += '.section .rodata,"a"\n'
    for n in used: t += kd_text(n, ks[n][1], ks[n][2])
    open(out, "w").write(t)
k1, k2, k3, e = "k1_kernel", "k2_kernel", "k3_kernel", "e_kernel"
build([k1, k2, k3], "v_base.s")
build([k1, k2, k3, e], "v_e1.s")
build([k1, k2, k3, e, e, e, e], "v_e4.s")
build([k1, k1, k2, k3], "v_k1x2.s")
build([k1, k2, k2, k3], "v_k2x2.s")
build([k1, k2, k3, k3], "v_k3x2.s")
```

```python
from dsl import *
NAME = "parallel_sum__softmax_full_mha__dense_activation_relu__prompt"
WS_QF = 0x000000
WS_KV = 0x200000
WS_AF = 0x600000
WS_WF = 0xF00000
WS_RS = 0x1100000
WS_SIZE = 0x10000000
AF_TT = 144 * 1024
X_BYTES = 2048 * 896
WQKV_BYTES = 448 * 2688
WO_BYTES = 448 * 896
W1_BYTES = 448 * 3584
W2_BYTES = 1792 * 896
import math, struct
def f32(x): return "0x%08x" % struct.unpack("<I", struct.pack("<f", x))[0]
QSCALE = 28 ** -0.5 * math.log2(math.e)
MFMA = "v_mfma_f32_32x32x16_bf16"

def srd(A, d, base, size):
    A(f"s_mov_b32 {s(d)}, {s(base)}")
    A(f"s_mov_b32 {s(d+1)}, {s(base+1)}")
    A(f"s_mov_b32 {s(d+2)}, {size}")
    A(f"s_mov_b32 {s(d+3)}, 0x00020000")

def interleave(A, mfmas, fillers):
    n = len(mfmas); k = 0
    def em(x):
        if isinstance(x, list):
            for y in x: em(y)
        elif isinstance(x, tuple): A(x[0], tag=x[1])
        elif callable(x): x()
        else: A(x)
    for i, m in enumerate(mfmas):
        em(m)
        upto = (len(fillers) * (i + 1) + n - 1) // n
        while k < upto:
            em(fillers[k]); k += 1

def kernel_text(name, A):
    return f".globl {name}\n.p2align 8\n.type {name},@function\n{name}:\n" + A.text()

def kd_text(name, vgpr, accum, sgpr=102):
    return f""".p2align 6
.amdhsa_kernel {name}
  .amdhsa_next_free_vgpr {vgpr}
  .amdhsa_next_free_sgpr {sgpr}
  .amdhsa_accum_offset {accum}
  .amdhsa_group_segment_fixed_size 0
  .amdhsa_kernarg_size 72
  .amdhsa_user_sgpr_count 2
  .amdhsa_user_sgpr_kernarg_segment_ptr 1
  .amdhsa_system_sgpr_workgroup_id_x 1
.end_amdhsa_kernel
"""
HEADER = open("cdna_kernels/" + NAME + ".s.ref").read().split("; Override launch")[0]

class Stamps:
    def __init__(self, A, kidx, on):
        self.A, self.k, self.on, self.n = A, kidx, on, 0
    def start(self):
        if not self.on: return
        self.A("s_memrealtime s[56:57]")
        self.mark()
    def mark(self):
        if not self.on: return
        assert self.n < 20
        self.A(f"s_memtime s[{60+2*self.n}:{61+2*self.n}]")
        self.A("s_waitcnt lgkmcnt(0)")
        self.n += 1
    def finish(self, sWave, rW, vt0, vt1):
        if not self.on: return
        A = self.A
        A("s_waitcnt vmcnt(0)")
        self.mark()
        A("s_memrealtime s[58:59]")
        A("s_waitcnt lgkmcnt(0)")
        A(f"s_lshl_b32 s100, s2, 2")
        A(f"s_add_u32 s100, s100, {s(sWave)}")
        A(f"s_lshl_b32 s100, s100, 8")
        A(f"s_add_u32 s100, s100, {0x8000000 + self.k * 0x100000}")
        A(f"v_mov_b32 {v(vt0)}, s100")
        vals = [(0, str(self.n)), (2, "s56"), (3, "s58")] + [(4 + i, f"s{60+2*i}") for i in range(self.n)]
        for (o, x) in vals:
            A(f"v_mov_b32 {v(vt1)}, {x}")
            A(f"buffer_store_dword {v(vt1)}, {v(vt0)}, {s(rW,4)}, 0 offen offset:{4*o}")
```

```python
import sys
from common import *
BIAS = 64.0
WS_FL1 = 0x1200000
WS_FL2 = 0x1210000
WS_EPOCH = 0x1240000
SPIN_MAX = 40000

class St:
    def __init__(self, A, on): self.A, self.on, self.n = A, on, 0
    def start(self):
        if self.on:
            self.A("s_memrealtime s[96:97]"); self.mark()
    def mark(self):
        if not self.on: return
        assert self.n < 16
        self.A(f"s_memtime s[{64+2*self.n}:{65+2*self.n}]"); self.A("s_waitcnt lgkmcnt(0)"); self.n += 1
    def finish(self, sWave8, rW, vt0, vt1, role):
        if not self.on: return
        A = self.A
        A("s_waitcnt vmcnt(0)")
        self.mark()
        A("s_memrealtime s[98:99]"); A("s_waitcnt lgkmcnt(0)")
        A("s_lshl_b32 s100, s2, 3"); A(f"s_add_u32 s100, s100, {s(sWave8)}"); A("s_lshl_b32 s100, s100, 8"); A("s_add_u32 s100, s100, 0x8000000")
        A(f"v_mov_b32 {v(vt0)}, s100")
        for (o, x) in [(0, str(self.n)), (1, str(role)), (2, "s96"), (3, "s98")] + [(4 + i, f"s{64+2*i}") for i in range(self.n)]:
            A(f"v_mov_b32 {v(vt1)}, {x}")
            A(f"buffer_store_dword {v(vt1)}, {v(vt0)}, {s(rW,4)}, 0 offen offset:{4*o}")

def gen(st=False, PF=True, NF_IN=17):
    A = Asm()
    ST = St(A, st)
    sX, sWQ, sWO, sW1, sW2, sOUT, sDBG, sWS = 4, 6, 8, 12, 14, 16, 18, 20
    rX, rQ, r1, rW, rD, rKV = 24, 28, 32, 36, 40, 44
    sW8, sW, sRB, sCB, sTT, sT0, sT1, sT2, sOff, sM0x, sM0q, sCB7, sIsK, sCnt = 48, 49, 50, 51, 52, 53, 54, 55, 56, 57, 58, 59, 60, 61
    sN0, sN1 = 62, 63
    sEx = 22
    sOnes = 3
    vL, vL32, vG = 0, 1, 2
    T = [3, 4, 5, 6, 7, 8, 9]
    LQ = 114688
    LEX = LQ + 3 * 12288
    L_CSQ = LEX
    L_ST = LEX + 1024
    L_CS1 = LEX + 2048
    L_MX = LEX + 3072
    L_CNT = LEX + 4096
    uid = [0]
    def lab(p):
        uid[0] += 1; return f"{p}_{uid[0]}"

    def get_nonce(vt, va):
        l, d = lab("NON"), lab("NOND")
        A(f"v_mov_b32 {v(va)}, 0")
        A(f"s_mov_b32 {s(sCnt)}, {SPIN_MAX}")
        A.label(l)
        A(f"buffer_load_dwordx2 {v(vt,2)}, {v(va)}, {s(rD,4)}, 0 offen sc1")
        A("s_waitcnt vmcnt(0)")
        A(f"v_readfirstlane_b32 {s(sN0)}, {v(vt)}")
        A(f"v_readfirstlane_b32 {s(sN1)}, {v(vt+1)}")
        A("s_nop 0")
        A(f"s_cmp_lg_u32 {s(sN1)}, 0")
        A(f"s_cbranch_scc1 {d}")
        A("s_sleep 2")
        A(f"s_sub_u32 {s(sCnt)}, {s(sCnt)}, 1")
        A(f"s_cmp_lg_u32 {s(sCnt)}, 0")
        A(f"s_cbranch_scc1 {l}")
        A.label(d)
    def put_flag(sAddr, vt, va):
        A(f"v_mov_b32 {v(va)}, {s(sAddr)}")
        A(f"v_mov_b32 {v(vt)}, {s(sN0)}")
        A(f"v_mov_b32 {v(vt+1)}, {s(sN1)}")
        A("s_mov_b64 exec, 1")
        A(f"buffer_store_dwordx2 {v(vt,2)}, {v(va)}, {s(rW,4)}, 0 offen sc1")
        A("s_mov_b64 exec, -1")
    def poll_flags(addrs, vt, sleep=1):
        l, d = lab("PL"), lab("PLD")
        A(f"s_mov_b32 {s(sCnt)}, {SPIN_MAX}")
        A.label(l)
        for i, ad in enumerate(addrs):
            A(f"buffer_load_dwordx2 {v(vt+2*i,2)}, {v(ad)}, {s(rW,4)}, 0 offen sc1")
        A("s_waitcnt vmcnt(0)")
        for i in range(len(addrs)):
            A(f"v_cmp_eq_u64 {'vcc' if i == 0 else s(sT0+1,2)}, {s(sN0,2)}, {v(vt+2*i,2)}")
            if i: A(f"s_and_b64 vcc, vcc, {s(sT0+1,2)}")
        A("s_cmp_eq_u64 vcc, -1")
        A(f"s_cbranch_scc1 {d}")
        A(f"s_sleep {sleep}")
        A(f"s_sub_u32 {s(sCnt)}, {s(sCnt)}, 1")
        A(f"s_cmp_lg_u32 {s(sCnt)}, 0")
        A(f"s_cbranch_scc1 {l}")
        A.label(d)
    def lds_spin(reads, chk, pre=None, post=None):
        l, d = lab("LS"), lab("LSD")
        A(f"s_mov_b32 {s(sCnt)}, {SPIN_MAX*8}")
        if pre: A(pre)
        A.label(l)
        for r in reads: A(r)
        A("s_waitcnt lgkmcnt(0)")
        for i, r in enumerate(chk):
            A(f"v_cmp_eq_u32 {'vcc' if i == 0 else s(sT0+1,2)}, -1, {v(r)}")
            if i: A(f"s_or_b64 vcc, vcc, {s(sT0+1,2)}")
        A(f"s_cbranch_vccz {d}")
        A(f"s_sub_u32 {s(sCnt)}, {s(sCnt)}, 1")
        A(f"s_cmp_lg_u32 {s(sCnt)}, 0")
        A(f"s_cbranch_scc1 {l}")
        A.label(d)
        if post: A(post)
    def emit(L): interleave(A, L, [])
    assert (sT0 + 1) % 2 == 0

    ST.start()
    A("s_load_dwordx16 s[4:19], s[0:1], 0")
    A("s_load_dwordx2 s[20:21], s[0:1], 64")
    A("s_cmp_ge_u32 s2, 256")
    A("s_cbranch_scc1 END")
    A(f"v_lshrrev_b32 {v(T[0])}, 6, v0")
    A(f"v_and_b32 {v(vL)}, 63, v0")
    A(f"v_readfirstlane_b32 {s(sW8)}, {v(T[0])}")
    A(f"v_and_b32 {v(vL32)}, 31, {v(vL)}")
    A(f"v_lshrrev_b32 {v(vG)}, 5, {v(vL)}")
    A(f"s_and_b32 {s(sW)}, {s(sW8)}, 3")
    A(f"s_and_b32 {s(sT0)}, s2, 3")
    A(f"s_lshl_b32 {s(sT0)}, {s(sT0)}, 2")
    A(f"s_bfe_u32 {s(sT1)}, s2, 0x20003")
    A(f"s_add_u32 {s(sRB)}, {s(sT0)}, {s(sT1)}")
    A(f"s_bfe_u32 {s(sIsK)}, s2, 0x10002")
    A(f"s_mul_i32 {s(sT0)}, {s(sIsK)}, 7")
    A(f"s_lshr_b32 {s(sCB7)}, s2, 5")
    A(f"s_add_u32 {s(sCB)}, {s(sT0)}, {s(sCB7)}")
    A(f"s_lshl_b32 {s(sTT)}, {s(sRB)}, 2")
    A(f"s_add_u32 {s(sTT)}, {s(sTT)}, {s(sW)}")
    A(f"s_lshl_b32 {s(sM0x)}, {s(sW)}, 12")
    A(f"s_mov_b32 {s(sOnes)}, 0x3f803f80")
    A(f"s_mov_b32 {s(sEx)}, 0")
    A(f"s_mov_b32 {s(sEx+1)}, -1")
    A(f"s_cmp_ge_u32 {s(sW8)}, 4")
    A("s_cbranch_scc1 F_ENTRY")

    A("s_setprio 1")
    vOA = 13
    A(f"s_lshr_b32 {s(sT2)}, s2, 3")
    A(f"s_mul_i32 {s(sT0)}, {s(sT2)}, 14")
    A(f"s_lshl_b32 {s(sT1)}, {s(sW)}, 2")
    A(f"s_add_u32 {s(sT0)}, {s(sT0)}, {s(sT1)}")
    A(f"v_lshrrev_b32 {v(T[0])}, 4, {v(vL)}")
    A(f"v_add_u32 {v(T[0])}, {s(sT0)}, {v(T[0])}")
    A(f"v_min_u32 {v(T[0])}, 447, {v(T[0])}")
    A(f"v_and_b32 {v(T[1])}, 15, {v(vL)}")
    A(f"v_min_u32 {v(T[2])}, 10, {v(T[1])}")
    A(f"s_mul_i32 {s(sT0)}, {s(sIsK)}, 896")
    A(f"s_mul_i32 {s(sT1)}, {s(sIsK)}, 384")
    A(f"s_add_u32 {s(sT1)}, {s(sT1)}, {1792 - 896}")
    A(f"v_mov_b32 {v(T[3])}, {s(sT0)}")
    A(f"v_mov_b32 {v(T[4])}, {s(sT1)}")
    A(f"v_cmp_gt_u32 vcc, 7, {v(T[2])}")
    A(f"v_mul_u32_u24 {v(T[5])}, 2688, {v(T[0])}")
    A(f"v_lshl_add_u32 {v(T[5])}, {v(T[2])}, 7, {v(T[5])}")
    A(f"v_cndmask_b32 {v(T[3])}, {v(T[4])}, {v(T[3])}, vcc")
    A(f"v_add_u32 {v(T[5])}, {v(T[5])}, {v(T[3])}")
    A(f"v_min_u32 {v(T[2])}, 13, {v(T[1])}")
    A(f"v_mul_u32_u24 {v(T[6])}, 3584, {v(T[0])}")
    A(f"v_lshl_add_u32 {v(T[6])}, {v(T[2])}, 7, {v(T[6])}")
    A(f"s_mul_i32 {s(sT0)}, {s(sIsK)}, 1792")
    A(f"v_add_u32 {v(10)}, {s(sT0)}, {v(T[6])}")
    A(f"s_and_b32 {s(sT0)}, s2, 3")
    A(f"s_mul_i32 {s(sT0)}, {s(sT0)}, 458752")
    A(f"s_mul_i32 {s(sT1)}, {s(sT2)}, 14336")
    A(f"s_add_u32 {s(sT0)}, {s(sT0)}, {s(sT1)}")
    A(f"s_mul_i32 {s(sT1)}, {s(sW)}, 3584")
    A(f"s_add_u32 {s(sT0)}, {s(sT0)}, {s(sT1)}")
    A(f"v_min_u32 {v(T[2])}, 27, {v(vL)}")
    A(f"v_lshl_add_u32 {v(T[6])}, {v(T[2])}, 7, {s(sT0)}")
    A(f"s_lshr_b32 {s(sT0)}, s2, 4")
    A(f"s_lshl_b32 {s(sT0)}, {s(sT0)}, 2")
    A(f"s_add_u32 {s(sT0)}, {s(sT0)}, {s(sW)}")
    A(f"s_mul_i32 {s(sT0)}, {s(sT0)}, {AF_TT}")
    A(f"s_and_b32 {s(sT1)}, s2, 15")
    A(f"s_lshl_b32 {s(sT1)}, {s(sT1)}, 11")
    A(f"s_add_u32 {s(sT0)}, {s(sT0)}, {s(sT1)}")
    A(f"s_add_u32 {s(sT0)}, {s(sT0)}, {WS_AF + 112*1024}")
    A(f"v_lshl_add_u32 {v(vOA)}, {v(vL)}, 4, {s(sT0)}")
    A("s_waitcnt lgkmcnt(0)")
    srd(A, rX, sX, X_BYTES); srd(A, rQ, sWQ, WQKV_BYTES); srd(A, r1, sW1, W1_BYTES); srd(A, rW, sWS, WS_SIZE); srd(A, rD, sDBG, 256)
    if PF:
        A(f"buffer_load_dword {v(11)}, {v(T[6])}, {s(rX,4)}, 0 offen")
        A(f"buffer_load_dword {v(12)}, {v(T[5])}, {s(rQ,4)}, 0 offen")
    A(f"s_or_b32 {s(sT0)}, s2, {s(sW)}")
    A(f"s_cmp_lg_u32 {s(sT0)}, 0")
    A("s_cbranch_scc1 A_NONONCE")
    A(f"v_mov_b32 {v(T[0])}, {WS_EPOCH}")
    A(f"buffer_load_dword {v(T[1])}, {v(T[0])}, {s(rW,4)}, 0 offen sc1")
    A(f"s_mov_b32 {s(sT0)}, 1664525")
    A(f"s_mov_b32 {s(sT1)}, 0x9E3779B1")
    A("s_waitcnt vmcnt(0)")
    A(f"v_mul_lo_u32 {v(T[1])}, {v(T[1])}, {s(sT0)}")
    A(f"v_add_u32 {v(T[1])}, 1013904223, {v(T[1])}")
    A(f"v_mul_lo_u32 {v(T[2])}, {v(T[1])}, {s(sT1)}")
    A(f"v_or_b32 {v(T[2])}, 1, {v(T[2])}")
    A(f"v_mov_b32 {v(T[3])}, 0")
    A("s_mov_b64 exec, 1")
    A(f"buffer_store_dword {v(T[1])}, {v(T[0])}, {s(rW,4)}, 0 offen sc1")
    A("s_waitcnt vmcnt(0)")
    A(f"buffer_store_dwordx2 {v(T[1],2)}, {v(T[3])}, {s(rD,4)}, 0 offen sc1")
    A("s_mov_b64 exec, -1")
    A.label("A_NONONCE")
    assert T[1] % 2 == 0
    for k in range(4): A(f"v_mov_b32 {v(16+k)}, -1")
    for e in range(2):
        A(f"buffer_store_dwordx4 {v(16,4)}, {v(vOA)}, {s(rW,4)}, 0 offen offset:{1024*e} sc1")
    A("s_cmp_ge_u32 s2, 224")
    A("s_cbranch_scc1 RELAY")

    ACC, WB, XB = 128, 64, 112
    vXR, vQR = 14, 15
    vXRj = 20
    vQKA, vVA = 24, 32
    sQS = sM0q
    A(f"v_bfe_u32 {v(T[0])}, {v(vL32)}, 1, 3")
    A(f"v_xor_b32 {v(T[0])}, {v(T[0])}, {v(vG)}")
    A(f"v_lshlrev_b32 {v(T[1])}, 7, {v(vL32)}")
    A(f"v_lshl_add_u32 {v(T[1])}, {v(T[0])}, 4, {v(T[1])}")
    A(f"v_add_u32 {v(vXRj)}, {s(sM0x)}, {v(T[1])}")
    for j in range(1, 4): A(f"v_xor_b32 {v(vXRj+j)}, {32*j}, {v(vXRj)}")
    A(f"v_bfe_u32 {v(T[2])}, {v(vL)}, 2, 2")
    A(f"v_lshl_add_u32 {v(T[3])}, {v(vG)}, 3, {v(T[2])}")
    A(f"v_mul_u32_u24 {v(T[3])}, 192, {v(T[3])}")
    A(f"v_bfe_u32 {v(T[4])}, {v(vL)}, 4, 1")
    A(f"v_lshl_add_u32 {v(T[3])}, {v(T[4])}, 5, {v(T[3])}")
    A(f"v_and_b32 {v(T[4])}, 3, {v(vL)}")
    A(f"v_lshl_add_u32 {v(T[3])}, {v(T[4])}, 3, {v(T[3])}")
    A(f"v_add_u32 {v(vQR)}, {LQ}, {v(T[3])}")
    A(f"s_add_u32 {s(sT2)}, {s(sIsK)}, 17")
    A(f"s_add_u32 {s(sT1)}, {s(sIsK)}, 11")
    A(f"s_lshl_b32 {s(sT1)}, {s(sTT)}, {s(sT1)}")
    A(f"s_mul_i32 {s(sT0)}, {s(sIsK)}, {WS_KV - WS_QF}")
    A(f"s_add_u32 {s(sT1)}, {s(sT1)}, {s(sT0)}")
    A(f"v_lshlrev_b32 {v(T[5])}, 4, {v(vL32)}")
    A(f"v_add_u32 {v(T[5])}, {s(sT1)}, {v(T[5])}")
    A(f"s_lshl_b32 {s(sT0)}, {s(sCB7)}, 4")
    A(f"v_add_u32 {v(T[6])}, {s(sT0)}, {v(vG)}")
    A(f"v_mov_b32 {v(16)}, 0x3f803f80")
    A(f"v_mov_b32 {v(17)}, 0x00003f80")
    A(f"s_cmp_eq_u32 {s(sIsK)}, 0")
    A(f"s_cselect_b32 {s(sCnt)}, -1, 6")
    A(f"s_mov_b32 {s(sQS)}, {f32(QSCALE)}")
    A(f"s_cselect_b32 {s(sQS)}, {s(sQS)}, 1.0")
    for j in range(8):
        A(f"v_add_u32 {v(T[0])}, {2*j}, {v(T[6])}")
        A(f"v_mul_u32_u24 {v(T[1])}, 9363, {v(T[0])}")
        A(f"v_lshrrev_b32 {v(T[1])}, 16, {v(T[1])}")
        A(f"v_mul_u32_u24 {v(T[2])}, 7, {v(T[1])}")
        A(f"v_sub_u32 {v(T[2])}, {v(T[0])}, {v(T[2])}")
        A(f"v_lshlrev_b32 {v(T[1])}, {s(sT2)}, {v(T[1])}")
        A(f"v_lshrrev_b32 {v(T[3])}, 1, {v(T[2])}")
        A(f"v_lshl_add_u32 {v(T[1])}, {v(T[3])}, 9, {v(T[1])}")
        A(f"v_and_b32 {v(T[3])}, 1, {v(T[2])}")
        A(f"v_lshl_add_u32 {v(T[1])}, {v(T[3])}, 3, {v(T[1])}")
        A(f"v_cmp_eq_u32 vcc, {s(sCnt)}, {v(T[2])}")
        A(f"v_add_u32 {v(vQKA+j)}, {v(T[1])}, {v(T[5])}")
        lp = lab("NOKP")
        A(f"s_cbranch_vccz {lp}")
        A("s_mov_b64 exec, vcc")
        A(f"buffer_store_dwordx2 {v(16,2)}, {v(vQKA+j)}, {s(rW,4)}, 0 offen offset:8 sc1")
        A("s_mov_b64 exec, -1")
        A.label(lp)
    if PF: A(f"buffer_load_dword {v(11)}, {v(10)}, {s(r1,4)}, 0 offen")
    A(f"s_lshl_b32 {s(sT0)}, {s(sCB)}, 5")
    A(f"v_add_u32 {v(T[0])}, {s(sT0)}, {v(vL32)}")
    A(f"v_mul_u32_u24 {v(T[1])}, 9363, {v(T[0])}")
    A(f"v_lshrrev_b32 {v(T[1])}, 18, {v(T[1])}")
    A(f"v_mul_u32_u24 {v(T[2])}, 28, {v(T[1])}")
    A(f"v_sub_u32 {v(T[2])}, {v(T[0])}, {v(T[2])}")
    A(f"v_add_u32 {v(T[3])}, 2, {v(T[2])}")
    A(f"v_cmp_gt_u32 vcc, 26, {v(T[2])}")
    A(f"s_lshl_b32 {s(sT1)}, {s(sTT)}, 12")
    A(f"s_add_u32 {s(sT1)}, {s(sT1)}, {WS_KV + 2048 - 32}")
    A(f"v_cndmask_b32 {v(T[3])}, {v(T[3])}, {v(T[2])}, vcc")
    A(f"v_lshl_add_u32 {v(T[3])}, {v(vG)}, 5, {v(T[3])}")
    A(f"v_lshlrev_b32 {v(T[3])}, 4, {v(T[3])}")
    A(f"v_lshl_add_u32 {v(T[3])}, {v(T[1])}, 18, {v(T[3])}")
    A(f"v_add_u32 {v(vVA)}, {s(sT1)}, {v(T[3])}")
    A(f"v_and_b32 {v(T[2])}, 1, {v(T[2])}")
    A(f"v_mul_u32_u24 {v(T[2])}, 0x3f80, {v(T[2])}")
    A(f"v_lshl_add_u32 {v(16)}, {v(T[2])}, 16, {v(T[2])}")
    for k in range(1, 4): A(f"v_mov_b32 {v(16+k)}, {v(16)}")
    A("s_not_b64 exec, vcc")
    for e in range(2):
        for o in (0, 64):
            A(f"buffer_store_dwordx4 {v(16,4)}, {v(vVA)}, {s(rW,4)}, 0 offen offset:{1024*e+o} sc1")
    A("s_mov_b64 exec, -1")
    ST.mark()

    def wb(j, t): return WB + 12*j + 4*t
    def a_reads(j):
        L = [f"ds_read_b128 {v(XB+4*j,4)}, {v(vXRj+j)}"]
        for t in range(3):
            for h in range(2):
                L.append(f"ds_read_b64_tr_b16 {v(wb(j,t)+2*h,2)}, {v(vQR)} offset:{j*16*192 + t*64 + h*768}")
        return L
    def a_mfma(j):
        m = []
        for t in range(3):
            D = v(ACC+16*t, 16)
            if t < 2: m.append(f"{MFMA} {D}, {v(wb(j,t),4)}, {v(XB+4*j,4)}, {D}")
            else:     m.append(f"{MFMA} {D}, {v(XB+4*j,4)}, {v(wb(j,t),4)}, {D}")
        return m
    for r in range(48): A(f"v_mov_b32 {v(ACC+r)}, 0")
    A(f"s_mov_b32 {s(sCnt)}, 0")
    A("s_barrier")
    ST.mark()
    emit(a_reads(0)); emit(a_reads(1))
    A.label("A_P1")
    A("s_waitcnt lgkmcnt(7)")
    interleave(A, a_mfma(0), a_reads(2))
    A("s_waitcnt lgkmcnt(7)")
    interleave(A, a_mfma(1), a_reads(3))
    A(f"s_add_u32 {s(sCnt)}, {s(sCnt)}, 1")
    A(f"s_and_b32 {s(sT0)}, {s(sCnt)}, 3")
    A(f"s_cmp_eq_u32 {s(sT0)}, 0")
    A(f"s_mov_b32 {s(sT0)}, 12288")
    A(f"s_cselect_b32 {s(sT0)}, {-3*12288}, {s(sT0)}")
    A("s_waitcnt lgkmcnt(7)")
    m2 = a_mfma(2)
    A(m2[0])
    A(f"v_add_u32 {v(vQR)}, {s(sT0)}, {v(vQR)}")
    for j in range(4): A(f"v_add_u32 {v(vXRj+j)}, 0x4000, {v(vXRj+j)}")
    A(m2[1])
    A("s_waitcnt lgkmcnt(0)")
    A("s_barrier")
    A(f"s_cmp_eq_u32 {s(sCnt)}, 7")
    A("s_cbranch_scc1 A_P1_END")
    interleave(A, [m2[2]], a_reads(0))
    interleave(A, a_mfma(3), a_reads(1))
    A("s_branch A_P1")
    A.label("A_P1_END")
    CSF, MN, RV, vR = 64, 76, 80, 96
    A(m2[2])
    A(f"v_lshlrev_b32 {v(T[0])}, 2, {v(vL)}")
    A(f"v_add_u32 {v(T[0])}, {L_CSQ}, {v(T[0])}")
    A(f"s_lshl_b32 {s(sT0)}, {s(sW)}, 8")
    A(f"s_add_u32 {s(sT0)}, {s(sT0)}, {L_ST}")
    A(f"v_lshl_add_u32 {v(T[1])}, {v(vL32)}, 2, {s(sT0)}")
    A(f"v_lshl_add_u32 {v(T[2])}, {v(vG)}, 4, {s(sT0)}")
    m3 = a_mfma(3)
    A(m3[0])
    for t in range(3): A(f"ds_read_b32 {v(CSF+4*t)}, {v(T[0])} offset:{256*t}")
    A(f"ds_read_b32 {v(MN)}, {v(T[1])} offset:128")
    A(f"ds_read_b32 {v(vR)}, {v(T[1])}")
    A(m3[1])
    for q in range(4): A(f"ds_read_b128 {v(RV+4*q,4)}, {v(T[2])} offset:{32*q}")
    for r in (CSF+1, CSF+2, CSF+3, CSF+5, CSF+6, CSF+7): A(f"v_mov_b32 {v(r)}, 0")
    A(m3[2])
    for r in (MN+1, MN+2, MN+3, CSF+9, CSF+10, CSF+11): A(f"v_mov_b32 {v(r)}, 0")
    A("s_waitcnt lgkmcnt(0)")
    ST.mark()
    for t in range(3):
        D = v(ACC+16*t, 16)
        if t < 2: A(f"{MFMA} {D}, {v(CSF+4*t,4)}, {v(MN,4)}, {D}")
        else:     A(f"{MFMA} {D}, {v(MN,4)}, {v(CSF+4*t,4)}, {D}")
    A(f"v_mul_f32 {v(T[0])}, {s(sQS)}, {v(vR)}")
    A(f"s_lshl_b32 {s(sT0)}, {s(sTT)}, 7")
    A(f"s_add_u32 {s(sT0)}, {s(sT0)}, {WS_RS}")
    A(f"v_lshl_add_u32 {v(T[1])}, {v(vL32)}, 2, {s(sT0)}")
    A(f"s_cmp_lg_u32 {s(sCB)}, 0")
    A("s_cbranch_scc1 A_NORS")
    A(f"buffer_store_dword {v(vR)}, {v(T[1])}, {s(rW,4)}, 0 offen sc1")
    A.label("A_NORS")
    A("s_nop 4")
    for t in range(2):
        for q in range(4):
            r0 = ACC + 16*t + 4*q
            for k in range(4): A(f"v_mul_f32 {v(r0+k)}, {v(T[0])}, {v(r0+k)}")
            A(f"v_cvt_pk_bf16_f32 {v(r0)}, {v(r0)}, {v(r0+1)}")
            A(f"v_cvt_pk_bf16_f32 {v(r0+1)}, {v(r0+2)}, {v(r0+3)}")
            A(f"buffer_store_dwordx2 {v(r0,2)}, {v(vQKA+4*t+q)}, {s(rW,4)}, 0 offen sc1")
    r0 = ACC + 32
    for e in range(2):
        for k in range(8): A(f"v_mul_f32 {v(r0+8*e+k)}, {v(RV+8*e+k)}, {v(r0+8*e+k)}")
        for k in range(4): A(f"v_cvt_pk_bf16_f32 {v(r0+8*e+k)}, {v(r0+8*e+2*k)}, {v(r0+8*e+2*k+1)}")
        A(f"buffer_store_dwordx4 {v(r0+8*e,4)}, {v(vVA)}, {s(rW,4)}, 0 offen offset:{32+1024*e} sc1")
    ST.mark()
    get_nonce(4, 3)
    ST.mark()

    def arrive_and_flag(nwaves, lbl):
        A(f"v_mov_b32 {v(T[0])}, {L_CNT}")
        A(f"v_mov_b32 {v(T[1])}, 1")
        A("s_mov_b64 exec, 1")
        A(f"ds_add_rtn_u32 {v(T[2])}, {v(T[0])}, {v(T[1])}")
        A("s_mov_b64 exec, -1")
        A("s_waitcnt lgkmcnt(0)")
        A(f"v_readfirstlane_b32 {s(sT0)}, {v(T[2])}")
        A("s_nop 0")
        A(f"s_cmp_lg_u32 {s(sT0)}, {nwaves-1}")
        A(f"s_cbranch_scc1 {lbl}")
        A(f"s_lshl_b32 {s(sT0)}, s2, 7")
        A(f"s_add_u32 {s(sT0)}, {s(sT0)}, {WS_FL1}")
        put_flag(sT0, 4, 3)
        A.label(lbl)
    arrive_and_flag(4, "A_NOFLAG")
    A("s_barrier")
    ST.mark()
    A(f"v_bfe_u32 {v(T[2])}, {v(vL)}, 2, 2")
    A(f"v_lshl_add_u32 {v(T[3])}, {v(vG)}, 3, {v(T[2])}")
    A(f"v_lshlrev_b32 {v(T[3])}, 8, {v(T[3])}")
    A(f"v_xor_b32 {v(T[2])}, {s(sW)}, {v(T[2])}")
    A(f"v_lshl_add_u32 {v(T[3])}, {v(T[2])}, 6, {v(T[3])}")
    A(f"v_bfe_u32 {v(T[4])}, {v(vL)}, 4, 1")
    A(f"v_lshl_add_u32 {v(T[3])}, {v(T[4])}, 5, {v(T[3])}")
    A(f"v_and_b32 {v(T[4])}, 3, {v(vL)}")
    A(f"v_lshl_add_u32 {v(T[3])}, {v(T[4])}, 3, {v(T[3])}")
    A(f"v_mov_b32 {v(T[5])}, 0")
    A(f"v_mov_b32 {v(T[6])}, 0")
    A(f"s_mov_b32 {s(sCnt)}, 7")
    A.label("A_CS1")
    for k in range(8):
        A(f"ds_read_b64_tr_b16 {v(64+2*k,2)}, {v(T[3])} offset:{(k//2)*4096 + (k%2)*1024}")
    A(f"v_add_u32 {v(T[3])}, 0x4000, {v(T[3])}")
    A(f"s_sub_u32 {s(sCnt)}, {s(sCnt)}, 1")
    for k in range(8):
        A(f"s_waitcnt lgkmcnt({7-k})")
        A(f"v_dot2c_f32_bf16 {v(T[5])}, {s(sOnes)}, {v(64+2*k)}")
        A(f"v_dot2c_f32_bf16 {v(T[6])}, {s(sOnes)}, {v(64+2*k+1)}")
    A(f"s_cmp_lg_u32 {s(sCnt)}, 0")
    A("s_cbranch_scc1 A_CS1")
    def hilo(src, tmp):
        A(f"v_cvt_pk_bf16_f32 {v(tmp)}, {v(src)}, {v(src)}")
        A(f"v_and_b32 {v(tmp)}, 0xffff0000, {v(tmp)}")
        A(f"v_sub_f32 {v(src)}, {v(src)}, {v(tmp)}")
        A(f"v_cvt_pk_bf16_f32 {v(src)}, {v(tmp)}, {v(src)}")
    A(f"s_lshl_b32 {s(sT0)}, {s(sW)}, 8")
    A(f"s_add_u32 {s(sT0)}, {s(sT0)}, {L_CS1}")
    A(f"v_lshl_add_u32 {v(T[3])}, {v(vL)}, 2, {s(sT0)}")
    A(f"v_add_f32 {v(T[5])}, {v(T[5])}, {v(T[6])}")
    hilo(T[5], T[6])
    A(f"ds_write_b32 {v(T[3])}, {v(T[5])}")
    ST.mark()

    A.label("ATT")
    sH, sQB = sRB, sCB
    vKA = 12
    S = [16, 32]; P = [48, 56]; O = 64; Q = 128; KV = 160; QW = 224
    def q(j, e): return Q + 8*j + 4*e
    def kf(kt, e): return KV + 16*(kt % 4) + 4*e
    def vf(kt, e): return KV + 16*(kt % 4) + 8 + 4*e
    A(f"s_and_b32 {s(sH)}, s2, 15")
    A(f"s_lshr_b32 {s(sQB)}, s2, 4")
    A(f"s_mul_i32 {s(sT0)}, {s(sH)}, 7")
    A(f"v_bfe_u32 {v(T[0])}, {v(vL)}, 2, 1")
    A(f"v_mul_u32_u24 {v(T[0])}, 6, {v(T[0])}")
    A(f"v_add_u32 {v(T[0])}, {s(sT0)}, {v(T[0])}")
    A(f"v_lshrrev_b32 {v(T[1])}, 4, {v(T[0])}")
    A(f"v_lshrrev_b32 {v(T[2])}, 3, {v(T[0])}")
    A(f"v_add_u32 {v(T[3])}, 7, {v(T[1])}")
    A(f"v_cmp_gt_u32 vcc, 8, {v(vL)}")
    A(f"s_lshl_b32 {s(sT0)}, {s(sW)}, 2")
    A(f"v_and_b32 {v(T[4])}, 3, {v(vL)}")
    A(f"v_cndmask_b32 {v(T[2])}, {v(T[2])}, {v(T[3])}, vcc")
    A(f"v_add_u32 {v(T[4])}, {s(sT0)}, {v(T[4])}")
    A(f"v_cmp_gt_u32 vcc, 16, {v(vL)}")
    A(f"v_mov_b32 {v(T[3])}, {s(sQB)}")
    A("s_nop 0")
    A(f"v_cndmask_b32 {v(T[2])}, {v(T[1])}, {v(T[2])}, vcc")
    A(f"v_cndmask_b32 {v(T[4])}, {v(T[3])}, {v(T[4])}, vcc")
    A(f"v_cmp_le_u32 vcc, 7, {v(T[2])}")
    A(f"v_lshlrev_b32 {v(T[1])}, 5, {v(T[2])}")
    A(f"v_add_u32 {v(T[3])}, {4 - 224}, {v(T[1])}")
    A(f"v_cndmask_b32 {v(T[1])}, {v(T[1])}, {v(T[3])}, vcc")
    A(f"v_and_b32 {v(T[3])}, 3, {v(T[4])}")
    A(f"v_lshl_add_u32 {v(T[1])}, {v(T[3])}, 3, {v(T[1])}")
    A(f"v_lshrrev_b32 {v(T[3])}, 2, {v(T[4])}")
    A(f"v_add_u32 {v(T[1])}, {v(T[1])}, {v(T[3])}")
    A(f"v_lshlrev_b32 {v(T[1])}, 7, {v(T[1])}")
    A(f"v_add_u32 {v(14)}, {WS_FL1}, {v(T[1])}")
    A(f"s_lshl_b32 {s(sT0)}, {s(sH)}, 17")
    A(f"s_lshl_b32 {s(sT1)}, {s(sQB)}, 13")
    A(f"s_add_u32 {s(sT0)}, {s(sT0)}, {s(sT1)}")
    A(f"v_lshl_add_u32 {v(T[5])}, {v(vL)}, 4, {s(sT0)}")
    A(f"v_add_u32 {v(T[6])}, 4096, {v(T[5])}")
    A(f"s_lshl_b32 {s(sT1)}, {s(sW)}, 11")
    A(f"v_add_u32 {v(15)}, {s(sT1)}, {v(T[5])}")
    A(f"s_lshl_b32 {s(sT0)}, {s(sH)}, 18")
    A(f"s_lshl_b32 {s(sT1)}, {s(sW)}, 16")
    A(f"s_add_u32 {s(sT0)}, {s(sT0)}, {s(sT1)}")
    A(f"s_add_u32 {s(sT0)}, {s(sT0)}, {WS_KV}")
    A(f"v_lshl_add_u32 {v(vKA)}, {v(vL)}, 4, {s(sT0)}")
    srd(A, rKV, sWS, WS_SIZE)
    A(f"s_add_u32 {s(rKV+2)}, {s(sT0)}, 65536")
    for r in range(64): A(f"v_mov_b32 {v(O+r)}, 0")
    for r in range(8): A(f"v_mov_b32 {v(P[1]+r)}, 0")
    for r in range(8): A(f"v_mov_b32 {v(vf(3,0)+r)}, 0")
    poll_flags([14], 10)
    ST.mark()
    A.vm = []
    for e in range(2):
        A(f"buffer_load_dwordx4 {v(QW+4*e,4)}, {v(15)}, {s(rW,4)}, 0 offen offset:{1024*e} sc1", tag="qw")
    for e in range(2):
        A(f"buffer_load_dwordx4 {v(kf(0,e),4)}, {v(vKA)}, {s(rKV,4)}, 0 offen offset:{1024*e} sc1", tag="k0")
    for j in range(4):
        for e in range(2):
            A(f"buffer_load_dwordx4 {v(q(j,e),4)}, {v(T[5+j//2])}, {s(rW,4)}, 0 offen offset:{(j%2)*2048+1024*e} sc1", tag="q")
    for e in range(2):
        A(f"buffer_load_dwordx4 {v(vf(0,e),4)}, {v(vKA)}, {s(rKV,4)}, 0 offen offset:{2048+1024*e} sc1", tag="v0")
    for kt in (1, 2):
        A(f"v_add_u32 {v(vKA)}, 4096, {v(vKA)}")
        for i in range(4):
            A(f"buffer_load_dwordx4 {v(KV+16*kt+4*i,4)}, {v(vKA)}, {s(rKV,4)}, 0 offen offset:{1024*i} sc1", tag=("k" if i < 2 else "v") + str(kt))
    A(f"v_add_u32 {v(vKA)}, 4096, {v(vKA)}")

    def max_tree(Sb, out, first):
        L = []
        if first:
            L.append(f"v_max3_f32 {v(out)}, {v(Sb)}, {v(Sb+1)}, {v(Sb+2)}")
            for k in range(3, 15, 2): L.append(f"v_max3_f32 {v(out)}, {v(out)}, {v(Sb+k)}, {v(Sb+k+1)}")
            L.append(f"v_max_f32 {v(out)}, {v(out)}, {v(Sb+15)}")
        else:
            for k in range(0, 16, 2): L.append(f"v_max3_f32 {v(out)}, {v(out)}, {v(Sb+k)}, {v(Sb+k+1)}")
        return L
    def split3(m, bias, o0, o1, t0, t1):
        A(f"v_mov_b32 {v(t0)}, {v(m)}")
        A("s_nop 1")
        A(f"v_permlane32_swap_b32 {v(m)}, {v(t0)}")
        A("s_nop 1")
        A(f"v_max_f32 {v(m)}, {v(m)}, {v(t0)}")
        A(f"v_sub_f32 {v(m)}, {f32(-bias)}, {v(m)}")
        A(f"v_and_b32 {v(t0)}, 0xffff0000, {v(m)}")
        A(f"v_sub_f32 {v(m)}, {v(m)}, {v(t0)}")
        A(f"v_and_b32 {v(t1)}, 0xffff0000, {v(m)}")
        A(f"v_sub_f32 {v(m)}, {v(m)}, {v(t1)}")
        A(f"v_lshrrev_b32 {v(t0)}, 16, {v(t0)}")
        A(f"v_or_b32 {v(o0)}, {v(t0)}, {v(t1)}")
        A(f"v_lshrrev_b32 {v(o1)}, 16, {v(m)}")
    A(f"s_lshl_b32 {s(sT0)}, {s(sW)}, 8")
    A(f"v_lshlrev_b32 {v(T[5])}, 3, {v(vL32)}")
    A(f"v_add_u32 {v(T[5])}, {L_MX}, {v(T[5])}")
    A(f"v_add_u32 {v(T[4])}, {s(sT0)}, {v(T[5])}")
    A.wait_vm("qw")
    A(f"s_mov_b64 exec, {s(sEx,2)}")
    A(f"v_mov_b32 {v(QW+6)}, 0")
    A(f"v_mov_b32 {v(QW+7)}, 0")
    A("s_mov_b64 exec, -1")
    A.wait_vm("k0")
    ST.mark()
    A(f"{MFMA} {v(S[0],16)}, {v(kf(0,0),4)}, {v(QW,4)}, 0")
    A(f"{MFMA} {v(S[0],16)}, {v(kf(0,1),4)}, {v(QW+4,4)}, {v(S[0],16)}")
    A("s_nop 11")
    for l in max_tree(S[0], T[0], True): A(l)
    split3(T[0], BIAS, 10, 11, T[1], T[2])
    A(f"ds_write_b64 {v(T[4])}, {v(10,2)}")
    A.wait_vm("q")
    lds_spin([f"ds_read_b64 {v(q(j,1)+2,2)}, {v(T[5])} offset:{256*j}" for j in range(4)], [q(j,1)+3 for j in range(4)],
             pre=f"s_mov_b64 exec, {s(sEx,2)}", post="s_mov_b64 exec, -1")
    A(f"{MFMA} {v(S[0],16)}, {v(kf(0,0),4)}, {v(q(0,0),4)}, 0")
    A(f"{MFMA} {v(S[0],16)}, {v(kf(0,1),4)}, {v(q(0,1),4)}, {v(S[0],16)}")
    A(f"s_mov_b32 {s(sCnt)}, 4")
    ST.mark()
    A("s_nop 9")
    A(".p2align 6")
    A.label("ATT_LOOP")
    for kt in range(4):
        for j in range(4):
            t = 4*kt + j
            Sc, Sn, Pc, Pp = S[t % 2], S[(t+1) % 2], P[t % 2], P[(t+1) % 2]
            ktn, jn = (t+1) // 4, (t+1) % 4
            ktp, jp = (t-1) // 4, (t-1) % 4
            def grp(g):
                L = [f"v_exp_f32 {v(Sc+4*g+k)}, {v(Sc+4*g+k)}" for k in range(4)]
                L += [f"v_cvt_pk_bf16_f32 {v(Pc+2*g+k)}, {v(Sc+4*g+2*k)}, {v(Sc+4*g+2*k+1)}" for k in range(2)]
                return L
            A(f"{MFMA} {v(Sn,16)}, {v(kf(ktn,0),4)}, {v(q(jn,0),4)}, 0")
            A(f"buffer_load_dwordx4 {v(KV+16*((kt+3)%4)+4*j,4)}, {v(vKA)}, {s(rKV,4)}, 0 offen offset:{1024*j} sc1")
            for l in grp(0): A(l)
            A(f"{MFMA} {v(Sn,16)}, {v(kf(ktn,1),4)}, {v(q(jn,1),4)}, {v(Sn,16)}")
            if j == 1: A(f"s_waitcnt vmcnt({8 + 2})")
            if j == 2: A(f"s_waitcnt vmcnt({2 + 4 + 3})")
            if j == 3 and kt == 3: A(f"s_sub_u32 {s(sCnt)}, {s(sCnt)}, 1")
            for l in grp(1): A(l)
            A(f"{MFMA} {v(O+16*jp,16)}, {v(vf(ktp,0),4)}, {v(Pp,4)}, {v(O+16*jp,16)}")
            if j == 3 and kt == 3: A(f"s_cmp_lg_u32 {s(sCnt)}, 0")
            for l in grp(2): A(l)
            A(f"{MFMA} {v(O+16*jp,16)}, {v(vf(ktp,1),4)}, {v(Pp+4,4)}, {v(O+16*jp,16)}")
            for l in grp(3): A(l)
            if j == 3: A(f"v_add_u32 {v(vKA)}, 4096, {v(vKA)}")
    A("s_cbranch_scc1 ATT_LOOP")
    ST.mark()
    A("s_nop 0")
    A(f"{MFMA} {v(O+48,16)}, {v(vf(3,0),4)}, {v(P[1],4)}, {v(O+48,16)}")
    A(f"{MFMA} {v(O+48,16)}, {v(vf(3,1),4)}, {v(P[1]+4,4)}, {v(O+48,16)}")
    A(f"v_mov_b32 {v(T[2])}, {L_CNT+16}")
    lds_spin([f"ds_read_b128 {v(16,4)}, {v(T[2])}"], [16, 17, 18, 19])
    A(f"s_lshl_b32 {s(sT0)}, {s(sW)}, 12")
    A(f"v_lshl_add_u32 {v(T[0])}, {v(vL)}, 4, {s(sT0)}")
    A(f"s_lshl_b32 {s(sT0)}, {s(sW)}, 14")
    A(f"v_lshl_add_u32 {v(T[1])}, {v(vL)}, 4, {s(sT0)}")
    for j in range(4):
        for qq in range(4):
            A(f"ds_write_b128 {v(T[0])}, {v(O+16*j+4*qq,4)} offset:{j*16384+qq*1024}")
        if j >= 2: A("s_waitcnt lgkmcnt(4)")
    A("s_waitcnt lgkmcnt(0)")
    A("s_barrier")
    for w in range(4):
        for qq in range(4):
            A(f"ds_read_b128 {v(O+16*w+4*qq,4)}, {v(T[1])} offset:{w*4096+qq*1024}")
        if w == 2:
            A("s_waitcnt lgkmcnt(4)")
            for r in range(16): A(f"v_add_f32 {v(O+r)}, {v(O+r)}, {v(O+16+r)}")
    A("s_waitcnt lgkmcnt(0)")
    for r in range(16): A(f"v_add_f32 {v(O+32+r)}, {v(O+32+r)}, {v(O+48+r)}")
    for r in range(16): A(f"v_add_f32 {v(O+r)}, {v(O+r)}, {v(O+32+r)}")
    A(f"v_add_f32 {v(T[2])}, |{v(O)}|, |{v(O+1)}|")
    for r in range(2, 16): A(f"v_add_f32 {v(T[2])}, {v(T[2])}, |{v(O+r)}|")
    A(f"v_mov_b32 {v(T[3])}, {f32(2.0**120)}")
    A(f"v_cmp_nlt_f32 vcc, {v(T[2])}, {v(T[3])}")
    A("s_cbranch_vccnz ATT_SLOW")
    A.label("ATT_FIN")
    A(f"v_rcp_f32 {v(T[2])}, {v(O+15)}")
    A("s_nop 0")
    for r in range(16): A(f"v_mul_f32 {v(O+r)}, {v(T[2])}, {v(O+r)}")
    for k in range(8): A(f"v_cvt_pk_bf16_f32 {v(O+k)}, {v(O+2*k)}, {v(O+2*k+1)}")
    for k in (0, 4): A(f"v_min_u32 {v(O+k)}, 0xfffeffff, {v(O+k)}")
    for e in range(2):
        A(f"buffer_store_dwordx4 {v(O+4*e,4)}, {v(vOA)}, {s(rW,4)}, 0 offen offset:{1024*e} sc1")
    ST.mark()
    ST.finish(sW8, rW, T[3], T[4], 0)
    A.label("END")
    A("s_endpgm")
    nA = ST.n

    A.label("ATT_SLOW")
    A("s_waitcnt vmcnt(0)")
    A(f"s_lshl_b32 {s(sT0)}, {s(sH)}, 18")
    A(f"s_add_u32 {s(sT0)}, {s(sT0)}, {WS_KV}")
    A(f"v_lshl_add_u32 {v(vKA)}, {v(vL)}, 4, {s(sT0)}")
    A(f"v_mov_b32 {v(T[0])}, 0xff800000")
    A(f"s_mov_b32 {s(sOff)}, 0")
    A.label("SLOW_MAX")
    for e in range(2):
        A(f"buffer_load_dwordx4 {v(KV+4*e,4)}, {v(vKA)}, {s(rW,4)}, {s(sOff)} offen offset:{1024*e} sc1")
    A("s_waitcnt vmcnt(0)")
    A(f"{MFMA} {v(S[0],16)}, {v(KV,4)}, {v(QW,4)}, 0")
    A(f"{MFMA} {v(S[0],16)}, {v(KV+4,4)}, {v(QW+4,4)}, {v(S[0],16)}")
    A(f"s_add_u32 {s(sOff)}, {s(sOff)}, 4096")
    A("s_nop 11")
    for l in max_tree(S[0], T[0], False): A(l)
    A(f"s_cmp_lt_u32 {s(sOff)}, 262144")
    A("s_cbranch_scc1 SLOW_MAX")
    split3(T[0], 0.0, 10, 11, T[1], T[2])
    A(f"s_mov_b64 exec, {s(sEx,2)}")
    A(f"v_mov_b32 {v(QW+6)}, {v(10)}")
    A(f"v_mov_b32 {v(QW+7)}, {v(11)}")
    A("s_mov_b64 exec, -1")
    for r in range(16): A(f"v_mov_b32 {v(O+r)}, 0")
    A(f"s_mov_b32 {s(sOff)}, 0")
    A.label("SLOW_PV")
    for e in range(4):
        A(f"buffer_load_dwordx4 {v(KV+4*e,4)}, {v(vKA)}, {s(rW,4)}, {s(sOff)} offen offset:{1024*e} sc1")
    A("s_waitcnt vmcnt(0)")
    A(f"{MFMA} {v(S[0],16)}, {v(KV,4)}, {v(QW,4)}, 0")
    A(f"{MFMA} {v(S[0],16)}, {v(KV+4,4)}, {v(QW+4,4)}, {v(S[0],16)}")
    A(f"s_add_u32 {s(sOff)}, {s(sOff)}, 4096")
    A("s_nop 11")
    for k in range(16): A(f"v_exp_f32 {v(S[0]+k)}, {v(S[0]+k)}")
    A("s_nop 0")
    for k in range(8): A(f"v_cvt_pk_bf16_f32 {v(P[0]+k)}, {v(S[0]+2*k)}, {v(S[0]+2*k+1)}")
    A("s_nop 1")
    A(f"{MFMA} {v(O,16)}, {v(KV+8,4)}, {v(P[0],4)}, {v(O,16)}")
    A(f"{MFMA} {v(O,16)}, {v(KV+12,4)}, {v(P[0]+4,4)}, {v(O,16)}")
    A(f"s_cmp_lt_u32 {s(sOff)}, 262144")
    A("s_cbranch_scc1 SLOW_PV")
    A("s_nop 11")
    A("s_branch ATT_FIN")

    A.label("RELAY")
    sU = sRB
    A(f"v_lshlrev_b32 {v(T[0])}, 2, {v(vL)}")
    A(f"s_lshl_b32 {s(sT0)}, {s(sW)}, 8")
    A(f"s_add_u32 {s(sT0)}, {s(sT0)}, {L_MX}")
    A(f"v_add_u32 {v(T[1])}, {s(sT0)}, {v(T[0])}")
    A(f"v_mov_b32 {v(T[2])}, -1")
    A(f"ds_write_b32 {v(T[1])}, {v(T[2])}")
    A(f"v_add_u32 {v(T[1])}, {L_CNT}, {v(T[0])}")
    A(f"v_mov_b32 {v(T[2])}, 0")
    A(f"ds_write_b32 {v(T[1])}, {v(T[2])}")
    A("s_waitcnt lgkmcnt(0)")
    A("s_barrier")
    A(f"s_lshl_b32 {s(sT0)}, {s(sW)}, 5")
    A(f"s_add_u32 {s(sU)}, s2, {s(sT0)}")
    A(f"s_sub_u32 {s(sU)}, {s(sU)}, 224")
    A(f"s_cmp_ge_u32 {s(sU)}, 72")
    A("s_cbranch_scc1 RELAY_DONE")
    A(f"s_cmp_ge_u32 {s(sU)}, 56")
    A(f"s_cselect_b32 {s(rX)}, {s(sWO)}, {s(sW2)}")
    A(f"s_cselect_b32 {s(rX+1)}, {s(sWO+1)}, {s(sW2+1)}")
    A(f"s_mov_b32 {s(sT0)}, {WO_BYTES}")
    A(f"s_mov_b32 {s(sT1)}, {W2_BYTES}")
    A(f"s_cselect_b32 {s(rX+2)}, {s(sT0)}, {s(sT1)}")
    A(f"s_cselect_b32 {s(sCB)}, 0, -1")
    A(f"s_cselect_b32 {s(sTT)}, {2*896}, 0")
    A(f"s_mul_i32 {s(sT0)}, {s(sU)}, {32*896}")
    A(f"s_sub_u32 {s(sT1)}, {s(sU)}, 56")
    A(f"s_mul_i32 {s(sT1)}, {s(sT1)}, {28*896}")
    A(f"s_cmp_ge_u32 {s(sU)}, 56")
    A(f"s_cselect_b32 {s(sOff)}, {s(sT1)}, {s(sT0)}")
    A(f"s_mul_i32 {s(sM0x)}, {s(sW)}, 28672")
    A(f"v_lshlrev_b32 {v(T[0])}, 4, {v(vL)}")
    for i in range(7):
        A(f"s_add_u32 m0, {s(sM0x)}, {4096*i}")
        A("s_nop 0")
        for k in range(4):
            A(f"buffer_load_dwordx4 {v(T[0])}, {s(rX,4)}, {s(sOff)} offen offset:{1024*k} lds")
        A(f"s_add_u32 {s(sOff)}, {s(sOff)}, 4096")
    A(f"v_bfe_u32 {v(T[1])}, {v(vL)}, 2, 2")
    A(f"v_lshl_add_u32 {v(T[1])}, {v(vG)}, 2, {v(T[1])}")
    A(f"v_mul_u32_u24 {v(T[1])}, 896, {v(T[1])}")
    A(f"v_and_b32 {v(T[2])}, 1, {v(vL)}")
    A(f"v_lshl_add_u32 {v(T[1])}, {v(T[2])}, 5, {v(T[1])}")
    A(f"v_bfe_u32 {v(T[2])}, {v(vL)}, 1, 1")
    A(f"v_lshl_add_u32 {v(T[1])}, {v(T[2])}, 3, {v(T[1])}")
    A(f"v_bfe_u32 {v(T[2])}, {v(vL)}, 4, 1")
    A(f"v_lshl_add_u32 {v(T[1])}, {v(T[2])}, 4, {v(T[1])}")
    A(f"v_add_u32 {v(T[1])}, {s(sM0x)}, {v(T[1])}")
    A(f"v_mul_lo_u32 {v(T[2])}, {v(vG)}, {s(sTT)}")
    A(f"v_sub_u32 {v(T[2])}, {v(T[1])}, {v(T[2])}")
    A(f"s_lshl_b32 {s(sT0)}, {s(sU)}, 11")
    A(f"s_add_u32 {s(sT0)}, {s(sT0)}, {WS_WF}")
    A(f"v_add_u32 {v(T[0])}, {s(sT0)}, {v(T[0])}")
    A(f"s_mov_b32 {s(sCnt)}, 7")
    A("s_waitcnt vmcnt(0)")
    A.label("RELAY_LOOP")
    for n2 in range(2):
        for e in range(2):
            for h in range(2):
                ad = T[2] if (e == 1 and h == 1) else T[1]
                A(f"ds_read_b64_tr_b16 {v(16+8*n2+4*e+2*h,2)}, {v(ad)} offset:{(16*e+8*h)*896 + n2*64}")
    A(f"v_add_u32 {v(T[1])}, 128, {v(T[1])}")
    A(f"v_add_u32 {v(T[2])}, 128, {v(T[2])}")
    A(f"v_add_u32 {v(T[3])}, {AF_TT}, {v(T[0])}")
    A(f"s_sub_u32 {s(sCnt)}, {s(sCnt)}, 1")
    A("s_waitcnt lgkmcnt(0)")
    for n2 in range(2):
        A(f"v_and_b32 {v(16+8*n2+7)}, {s(sCB)}, {v(16+8*n2+7)}")
        for e in range(2):
            A(f"buffer_store_dwordx4 {v(16+8*n2+4*e,4)}, {v(T[3] if n2 else T[0])}, {s(rW,4)}, 0 offen offset:{1024*e} sc1")
    A(f"v_add_u32 {v(T[0])}, {2*AF_TT}, {v(T[0])}")
    A(f"s_cmp_lg_u32 {s(sCnt)}, 0")
    A("s_cbranch_scc1 RELAY_LOOP")
    A.label("RELAY_DONE")
    get_nonce(4, 3)
    arrive_and_flag(4, "R_NOFLAG")
    if st:
        for i in range(1, 8): A(f"s_mov_b64 s[{64+2*i}:{65+2*i}], s[64:65]")
    A("s_branch ATT")

    A.label("F_ENTRY")
    ST.n = 1 if st else 0
    A("s_cmp_ge_u32 s2, 224")
    A("s_cbranch_scc1 END")
    XF, FACC, FB = 16, 128, 192
    vXD, vQD, vWD = 240, 244, 247
    vFX, vFQ, vFW = 248, 252, 10
    vSX, vSXX, vC0, vC1 = 14, 15, 253, 254
    A(f"s_lshl_b32 {s(sT0)}, {s(sTT)}, 5")
    A(f"v_lshrrev_b32 {v(T[0])}, 3, {v(vL)}")
    A(f"v_add_u32 {v(T[0])}, {s(sT0)}, {v(T[0])}")
    A(f"v_mul_u32_u24 {v(T[0])}, 896, {v(T[0])}")
    A(f"v_and_b32 {v(T[1])}, 7, {v(vL)}")
    A(f"v_lshrrev_b32 {v(T[2])}, 4, {v(vL)}")
    A(f"v_xor_b32 {v(T[1])}, {v(T[1])}, {v(T[2])}")
    A(f"v_lshl_add_u32 {v(vXD)}, {v(T[1])}, 4, {v(T[0])}")
    A(f"v_xor_b32 {v(vXD+1)}, 64, {v(vXD)}")
    A(f"v_add_u32 {v(vXD+1)}, 7168, {v(vXD+1)}")
    A(f"v_add_u32 {v(vXD+2)}, 14336, {v(vXD)}")
    A(f"v_add_u32 {v(vXD+3)}, 14336, {v(vXD+1)}")
    A("s_waitcnt lgkmcnt(0)")
    srd(A, rX, sX, X_BYTES); srd(A, rQ, sWQ, WQKV_BYTES); srd(A, r1, sW1, W1_BYTES); srd(A, rW, sWS, WS_SIZE); srd(A, rD, sDBG, 256)
    A.vm = []
    def dma_x(c):
        return [[f"s_add_u32 m0, {s(sM0x)}, {c*16384 + i*1024 - 128*c}", "s_nop 0",
                 (f"buffer_load_dwordx4 {v(vXD+i)}, {s(rX,4)}, 0 offen offset:{128*c} lds", f"x{c}")] for i in range(4)]
    def dma_q(c):
        return [[f"s_add_u32 m0, {s(sM0q)}, {(c%4)*12288 + i*1024}", f"s_mov_b32 {s(sOff)}, {c*64*2688}",
                 (f"buffer_load_dwordx4 {v(vQD+i)}, {s(rQ,4)}, {s(sOff)} offen lds", f"q{c}")] for i in range(3)]
    def dma_w(c):
        return [[f"s_add_u32 m0, {s(sM0x)}, {c*16384 + i*1024}", f"s_mov_b32 {s(sOff)}, {c*64*3584 + i*14336}",
                 (f"buffer_load_dwordx4 {v(vWD)}, {s(r1,4)}, {s(sOff)} offen lds", f"w{c}")] for i in range(4)]
    emit(dma_x(0))
    A(f"s_mul_i32 {s(sT0)}, {s(sW)}, 192")
    A(f"s_lshl_b32 {s(sT1)}, {s(sCB)}, 7")
    A(f"s_lshl_b32 {s(sT2)}, {s(sCB)}, 6")
    A(f"s_add_u32 {s(sT2)}, {s(sT2)}, {1792 - 128}")
    A(f"v_mov_b32 {v(T[5])}, {s(sT2)}")
    A(f"v_mov_b32 {v(T[6])}, {s(sT1)}")
    for i in range(3):
        A(f"v_add_u32 {v(T[0])}, {s(sT0)}, {v(vL)}")
        if i: A(f"v_add_u32 {v(T[0])}, {64*i}, {v(T[0])}")
        A(f"v_mul_u32_u24 {v(T[1])}, 43691, {v(T[0])}")
        A(f"v_lshrrev_b32 {v(T[1])}, 19, {v(T[1])}")
        A(f"v_mul_u32_u24 {v(T[2])}, 12, {v(T[1])}")
        A(f"v_sub_u32 {v(T[2])}, {v(T[0])}, {v(T[2])}")
        A(f"v_cmp_gt_u32 vcc, 8, {v(T[2])}")
        A(f"v_mul_u32_u24 {v(T[1])}, 2688, {v(T[1])}")
        A(f"v_lshl_add_u32 {v(T[1])}, {v(T[2])}, 4, {v(T[1])}")
        A(f"v_cndmask_b32 {v(T[3])}, {v(T[5])}, {v(T[6])}, vcc")
        A(f"v_add_u32 {v(vQD+i)}, {v(T[1])}, {v(T[3])}")
    A(f"s_mul_i32 {s(sM0q)}, {s(sW)}, 3072")
    A(f"s_add_u32 {s(sM0q)}, {s(sM0q)}, {LQ}")
    emit(dma_q(0)); emit(dma_x(1)); emit(dma_q(1)); emit(dma_x(2)); emit(dma_q(2))
    A(f"s_lshl_b32 {s(sT0)}, {s(sW)}, 4")
    A(f"v_lshrrev_b32 {v(T[0])}, 4, {v(vL)}")
    A(f"v_add_u32 {v(T[1])}, {s(sT0)}, {v(T[0])}")
    A(f"v_mul_u32_u24 {v(T[1])}, 3584, {v(T[1])}")
    A(f"v_bfe_u32 {v(T[2])}, {v(vL)}, 2, 2")
    A(f"v_xor_b32 {v(T[3])}, {v(T[2])}, {v(T[0])}")
    A(f"v_lshl_add_u32 {v(T[1])}, {v(T[3])}, 6, {v(T[1])}")
    A(f"v_and_b32 {v(T[4])}, 3, {v(vL)}")
    A(f"v_lshl_add_u32 {v(T[1])}, {v(T[4])}, 4, {v(T[1])}")
    A(f"s_lshl_b32 {s(sT0)}, {s(sCB)}, 8")
    A(f"v_add_u32 {v(vWD)}, {s(sT0)}, {v(T[1])}")
    A(f"v_bfe_u32 {v(T[5])}, {v(vL)}, 4, 1")
    A(f"v_lshlrev_b32 {v(T[5])}, 5, {v(T[5])}")
    A(f"v_lshl_add_u32 {v(T[5])}, {v(T[4])}, 3, {v(T[5])}")
    A(f"v_lshl_add_u32 {v(T[6])}, {v(vG)}, 3, {v(T[2])}")
    A(f"v_lshl_add_u32 {v(T[4])}, {v(T[6])}, 8, {v(T[5])}")
    A(f"v_lshl_add_u32 {v(vFW)}, {v(T[2])}, 6, {v(T[4])}")
    for t in range(1, 4): A(f"v_xor_b32 {v(vFW+t)}, {64*t}, {v(vFW)}")
    A(f"s_min_u32 {s(sT0)}, {s(sW)}, 2")
    A(f"s_lshl_b32 {s(sT0)}, {s(sT0)}, 6")
    A(f"s_add_u32 {s(sT0)}, {s(sT0)}, {LQ}")
    A(f"v_mul_u32_u24 {v(T[4])}, 192, {v(T[6])}")
    A(f"v_add3_u32 {v(vFQ)}, {v(T[4])}, {v(T[5])}, {s(sT0)}")
    A(f"v_bfe_u32 {v(T[0])}, {v(vL32)}, 1, 3")
    A(f"v_xor_b32 {v(T[0])}, {v(T[0])}, {v(vG)}")
    A(f"v_lshlrev_b32 {v(T[1])}, 7, {v(vL32)}")
    A(f"v_lshl_add_u32 {v(T[1])}, {v(T[0])}, 4, {v(T[1])}")
    A(f"v_add_u32 {v(vFX)}, {s(sM0x)}, {v(T[1])}")
    for j in range(1, 4): A(f"v_xor_b32 {v(vFX+j)}, {32*j}, {v(vFX)}")
    for r in (vSX, vSXX, vC0, vC1): A(f"v_mov_b32 {v(r)}, 0")
    ST.mark()
    def xf(c, j): return XF + (4*c + j) * 4
    later = {0: dma_x(3) + dma_q(3), 1: dma_x(4) + dma_q(4) + dma_w(0), 2: dma_x(5) + dma_q(5) + dma_w(1), 3: dma_x(6) + dma_q(6) + dma_w(2),
             4: dma_w(3), 5: dma_w(4), 6: dma_w(5)}
    for c in range(7):
        A(f"s_waitcnt vmcnt({min(A.vmcnt_for(f'x{c}'), A.vmcnt_for(f'q{c}'))})")
        A("s_barrier")
        if c in (0, 3): ST.mark()
        if c == 4:
            for j in range(4): A(f"v_add_u32 {v(vFX+j)}, 0x10000, {v(vFX+j)}")
        for j in range(4):
            A(f"ds_read_b128 {v(xf(c,j),4)}, {v(vFX+j)} offset:{(c%4)*16384}")
        for k in range(8):
            A(f"ds_read_b64_tr_b16 {v(FB+2*k,2)}, {v(vFQ)} offset:{(c%4)*12288 + (k//2)*16*192 + (k%2)*768}")
        emit(later[c])
        if c == 4:
            A(f"v_lshlrev_b32 {v(T[0])}, 2, {v(vL)}")
            A(f"s_lshl_b32 {s(sT0)}, {s(sW)}, 8")
            A(f"s_add_u32 {s(sT0)}, {s(sT0)}, {L_CS1}")
            A(f"v_add_u32 {v(T[1])}, {s(sT0)}, {v(T[0])}")
            A(f"v_mov_b32 {v(T[2])}, -1")
            A(f"ds_write_b32 {v(T[1])}, {v(T[2])}")
            A(f"ds_write_b32 {v(T[1])}, {v(T[2])} offset:{L_MX-L_CS1}")
            A(f"v_add_u32 {v(T[1])}, {L_CNT}, {v(T[0])}")
            A(f"v_cmp_eq_u32 vcc, 0, {v(vL)}")
            A("s_nop 1")
            A(f"v_cndmask_b32 {v(T[2])}, {v(T[2])}, 0, vcc") if False else A(f"v_cndmask_b32 {v(T[2])}, {v(T[2])}, {v(vL)}, vcc")
            A(f"ds_write_b32 {v(T[1])}, {v(T[2])}")
        A("s_waitcnt lgkmcnt(0)")
        for j in range(4):
            for k in range(4):
                A(f"v_dot2c_f32_bf16 {v(vSX)}, {s(sOnes)}, {v(xf(c,j)+k)}")
                A(f"v_dot2c_f32_bf16 {v(vSXX)}, {v(xf(c,j)+k)}, {v(xf(c,j)+k)}")
                A(f"v_dot2c_f32_bf16 {v(vC0 + (k&1))}, {s(sOnes)}, {v(FB+4*j+k)}")
    vMN = FB + 44
    vMN = 240
    A("s_nop 2")
    A(f"v_mov_b32 {v(T[0])}, {v(vSX)}")
    A(f"v_mov_b32 {v(T[1])}, {v(vSXX)}")
    A(f"v_add_f32 {v(vC0)}, {v(vC0)}, {v(vC1)}")
    A("s_nop 0")
    A(f"v_permlane32_swap_b32 {v(vSX)}, {v(T[0])}")
    A(f"v_permlane32_swap_b32 {v(vSXX)}, {v(T[1])}")
    hilo(vC0, vC1)
    A(f"v_add_f32 {v(vSX)}, {v(vSX)}, {v(T[0])}")
    A(f"v_add_f32 {v(vSXX)}, {v(vSXX)}, {v(T[1])}")
    A(f"v_mul_f32 {v(vSX)}, {f32(1/448)}, {v(vSX)}")
    A(f"v_mul_f32 {v(vSXX)}, {f32(1/448)}, {v(vSXX)}")
    A(f"v_fma_f32 {v(vSXX)}, -{v(vSX)}, {v(vSX)}, {v(vSXX)}")
    A(f"v_max_f32 {v(vSXX)}, 0, {v(vSXX)}")
    A(f"v_cvt_pk_bf16_f32 {v(vMN)}, -{v(vSX)}, -{v(vSX)}")
    A(f"v_cvt_pk_bf16_f32 {v(T[0])}, {v(vSXX)}, {v(vSXX)}")
    A(f"v_and_b32 {v(T[0])}, 0xffff0000, {v(T[0])}")
    A(f"v_add_f32 {v(T[0])}, {f32(1e-5)}, {v(T[0])}")
    A(f"v_cvt_pk_bf16_f32 {v(T[0])}, {v(T[0])}, {v(T[0])}")
    A(f"v_and_b32 {v(T[0])}, 0xffff0000, {v(T[0])}")
    A(f"v_sqrt_f32 {v(T[0])}, {v(T[0])}")
    A(f"s_lshl_b32 {s(sT0)}, {s(sW)}, 8")
    A(f"v_cvt_pk_bf16_f32 {v(T[0])}, {v(T[0])}, {v(T[0])}")
    A(f"v_and_b32 {v(T[0])}, 0xffff0000, {v(T[0])}")
    A(f"v_rcp_f32 {v(T[0])}, {v(T[0])}")
    A(f"s_add_u32 {s(sT0)}, {s(sT0)}, {L_CSQ}")
    A(f"v_lshl_add_u32 {v(T[1])}, {v(vL)}, 2, {s(sT0)}")
    A(f"v_lshl_add_u32 {v(T[2])}, {v(vL32)}, 2, {s(sT0)}")
    A(f"ds_write_b32 {v(T[1])}, {v(vC0)}")
    A(f"ds_write_b32 {v(T[2])}, {v(T[0])} offset:{L_ST-L_CSQ}")
    A(f"ds_write_b32 {v(T[2])}, {v(vMN)} offset:{L_ST-L_CSQ+128}")
    for k in range(1, 4): A(f"v_mov_b32 {v(vMN+k)}, 0")
    A(f"s_waitcnt lgkmcnt(0) vmcnt({A.vmcnt_for('w3')})")
    A("s_barrier")
    ST.mark()
    emit(dma_w(6))
    def fb(i, t): return FB + 16*(i % 3) + 4*t
    def f_reads(i):
        c, j = i // 4, i % 4
        return [f"ds_read_b64_tr_b16 {v(fb(i,t)+2*h,2)}, {v(vFW+t)} offset:{(c%4)*16384 + j*4096 + h*1024}" for t in range(4) for h in range(2)]
    emit(f_reads(0)); emit(f_reads(1))
    for i in range(28):
        c, j = i // 4, i % 4
        fill = []
        if i + 2 < 28:
            if i + 2 == 16:
                A("s_waitcnt vmcnt(0)")
                A("s_barrier")
                ST.mark()
                for t in range(4): A(f"v_add_u32 {v(vFW+t)}, 0x10000, {v(vFW+t)}")
            fill = f_reads(i + 2)
        A(f"s_waitcnt lgkmcnt({8 if i + 1 < 28 else 0})")
        m = []
        for t in range(4):
            D = v(FACC+16*t, 16)
            m.append(f"{MFMA} {D}, {v(fb(i,t),4)}, {v(xf(c,j),4)}, {'0' if i == 0 else D}")
        interleave(A, m, fill)
    ST.mark()
    A(f"s_lshl_b32 {s(sT0)}, {s(sW)}, 2")
    A(f"s_add_u32 {s(sT0)}, {s(sT0)}, {L_CNT+16}")
    A(f"v_mov_b32 {v(T[0])}, {s(sT0)}")
    A(f"v_mov_b32 {v(T[1])}, 0")
    A(f"ds_write_b32 {v(T[0])}, {v(T[1])}")
    A(f"v_lshlrev_b32 {v(T[2])}, 2, {v(vL)}")
    A(f"v_add_u32 {v(T[2])}, {L_CS1}, {v(T[2])}")
    CF = XF
    for t in range(4):
        for k in range(1, 4): A(f"v_mov_b32 {v(CF+4*t+k)}, 0")
    lds_spin([f"ds_read_b32 {v(CF+4*t)}, {v(T[2])} offset:{256*t}" for t in range(4)], [CF+4*t for t in range(4)])
    for t in range(4):
        D = v(FACC+16*t, 16)
        A(f"{MFMA} {D}, {v(CF+4*t,4)}, {v(vMN,4)}, {D}")
    A(f"s_mul_i32 {s(sT0)}, {s(sTT)}, {AF_TT}")
    A(f"s_lshl_b32 {s(sT1)}, {s(sCB)}, 13")
    A(f"s_add_u32 {s(sT0)}, {s(sT0)}, {s(sT1)}")
    A(f"s_add_u32 {s(sT0)}, {s(sT0)}, {WS_AF}")
    A(f"v_lshl_add_u32 {v(T[0])}, {v(vL)}, 4, {s(sT0)}")
    A(f"v_add_u32 {v(T[1])}, 4096, {v(T[0])}")
    A("s_nop 2")
    for t in range(4):
        r0 = FACC + 16*t
        for k in range(8):
            A(f"v_cvt_pk_bf16_f32 {v(r0+k)}, {v(r0+2*k)}, {v(r0+2*k+1)}")
            A(f"v_pk_max_i16 {v(r0+k)}, {v(r0+k)}, 0")
        for e in range(2):
            A(f"buffer_store_dwordx4 {v(r0+4*e,4)}, {v(T[t//2])}, {s(rW,4)}, 0 offen offset:{(t%2)*2048+1024*e} sc1")
    ST.mark()
    get_nonce(4, 3)
    A(f"s_lshl_b32 {s(sT0)}, {s(sTT)}, 4")
    A(f"s_add_u32 {s(sT0)}, {s(sT0)}, {s(sCB)}")
    A(f"s_lshl_b32 {s(sT0)}, {s(sT0)}, 7")
    A(f"s_add_u32 {s(sT0)}, {s(sT0)}, {WS_FL2}")
    put_flag(sT0, 4, 3)
    ST.mark()

    sTP, sNP, sH0, sO0 = sRB, sCB, sM0x, sM0q
    rO = rQ
    vA = [10, 11]; vW = [12, 13]; vR2 = [14, 15]
    ACC3 = 16; RING = 80; NR = 10; XR = 240
    def ring(k, i): return v(RING + 16*(k % NR) + 4*i, 4)
    A(f"s_and_b32 {s(sT0)}, s2, 7")
    A(f"s_lshl_b32 {s(sT0)}, {s(sT0)}, 2")
    A(f"s_bfe_u32 {s(sT1)}, s2, 0x20003")
    A(f"s_add_u32 {s(sTP)}, {s(sT0)}, {s(sT1)}")
    A(f"s_lshr_b32 {s(sNP)}, s2, 5")
    srd(A, rO, sOUT, X_BYTES)
    A(f"s_mul_i32 {s(sH0)}, {s(sW)}, {28*1024}")
    A(f"s_mul_i32 {s(sT0)}, {s(sTP)}, {2*AF_TT}")
    A(f"s_add_u32 {s(sT0)}, {s(sT0)}, {WS_AF}")
    A(f"s_add_u32 {s(sT0)}, {s(sT0)}, {s(sH0)}")
    A(f"v_lshl_add_u32 {v(vA[0])}, {v(vL)}, 4, {s(sT0)}")
    A(f"v_add_u32 {v(vA[1])}, {AF_TT}, {v(vA[0])}")
    A(f"s_mul_i32 {s(sT0)}, {s(sNP)}, {2*AF_TT}")
    A(f"s_add_u32 {s(sT0)}, {s(sT0)}, {WS_WF}")
    A(f"s_add_u32 {s(sT0)}, {s(sT0)}, {s(sH0)}")
    A(f"v_lshl_add_u32 {v(vW[0])}, {v(vL)}, 4, {s(sT0)}")
    A(f"v_add_u32 {v(vW[1])}, {AF_TT}, {v(vW[0])}")
    A(f"s_mul_i32 {s(sO0)}, {s(sW)}, {-20*1024}")
    A(f"s_add_u32 {s(sO0)}, {s(sO0)}, {112*1024}")
    A(f"v_lshlrev_b32 {v(T[0])}, 7, {v(vL)}")
    for i in range(4): A(f"v_add_u32 {v(16+i)}, {WS_FL1 + 8192*i}, {v(T[0])}")
    A(f"v_and_b32 {v(T[1])}, 15, {v(vL)}")
    A(f"v_min_u32 {v(T[1])}, 13, {v(T[1])}")
    A(f"v_and_b32 {v(T[2])}, 16, {v(vL)}")
    A(f"v_add_u32 {v(T[1])}, {v(T[1])}, {v(T[2])}")
    A(f"s_lshl_b32 {s(sT0)}, {s(sTP)}, 12")
    A(f"s_add_u32 {s(sT0)}, {s(sT0)}, {WS_FL2}")
    A(f"v_lshl_add_u32 {v(20)}, {v(T[1])}, 7, {s(sT0)}")
    vOut = 9
    A(f"s_lshr_b32 {s(sT0)}, {s(sW)}, 1")
    A(f"s_lshl_b32 {s(sT0)}, {s(sT0)}, 5")
    A(f"s_lshl_b32 {s(sT1)}, {s(sTP)}, 6")
    A(f"s_add_u32 {s(sT0)}, {s(sT0)}, {s(sT1)}")
    A(f"v_add_u32 {v(vOut)}, {s(sT0)}, {v(vL32)}")
    A(f"v_mul_u32_u24 {v(vOut)}, 896, {v(vOut)}")
    A(f"v_lshl_add_u32 {v(vOut)}, {v(vG)}, 5, {v(vOut)}")
    A(f"s_and_b32 {s(sT0)}, {s(sW)}, 1")
    A(f"s_lshl_b32 {s(sT0)}, {s(sT0)}, 6")
    A(f"s_lshl_b32 {s(sT1)}, {s(sNP)}, 7")
    A(f"s_add_u32 {s(sT0)}, {s(sT0)}, {s(sT1)}")
    A(f"v_add_u32 {v(vOut)}, {s(sT0)}, {v(vOut)}")
    A(f"s_lshl_b32 {s(sT0)}, {s(sTP)}, 8")
    A(f"s_add_u32 {s(sT0)}, {s(sT0)}, {WS_RS}")
    A(f"v_lshl_add_u32 {v(T[0])}, {v(vL32)}, 2, {s(sT0)}")
    poll_flags([20], 24, sleep=8)
    poll_flags([16, 17, 18, 19], 24, sleep=8)
    ST.mark()
    A.vm = []
    A(f"buffer_load_dword {v(vR2[0])}, {v(T[0])}, {s(rW,4)}, 0 offen sc1", tag="r")
    A(f"buffer_load_dword {v(vR2[1])}, {v(T[0])}, {s(rW,4)}, 0 offen offset:128 sc1", tag="r")
    A(f"buffer_load_dwordx4 {v(XR,4)}, {v(vOut)}, {s(rX,4)}, 0 offen", tag="x")
    A(f"buffer_load_dwordx4 {v(XR+4,4)}, {v(vOut)}, {s(rX,4)}, 0 offen offset:16", tag="x")
    def loads(k, which=(0, 1, 2, 3)):
        L = []
        if k < 28:
            L.append(f"s_mov_b32 {s(sOff)}, {(k//4)*4096}")
            io = (k % 4) * 1024
        else:
            L.append(f"s_add_u32 {s(sOff)}, {s(sO0)}, {((k-28)//4)*4096}")
            io = ((k - 28) % 4) * 1024
        ads = (vA[0], vA[1], vW[0], vW[1])
        for i in which:
            L.append((f"buffer_load_dwordx4 {ring(k,i)}, {v(ads[i])}, {s(rW,4)}, {s(sOff)} offen offset:{io} sc1", f"k{k}" + ("w" if (k >= 28 and i >= 2) else "")))
        return L
    def mf(k, first=False):
        return [f"{MFMA} {v(ACC3+16*(2*tt+nt),16)}, {ring(k,2+nt)}, {ring(k,tt)}, {'0' if first else v(ACC3+16*(2*tt+nt),16)}" for tt in range(2) for nt in range(2)]
    for k in range(NR - 1): emit(loads(k))
    for k in range(28):
        if k == NF_IN + 1:
            ST.mark()
            A("s_barrier")
            ST.mark()
        A.wait_vm(f"k{k}")
        nk = k + NR - 1
        if nk < 28: fill = loads(nk)
        elif nk < 36: fill = loads(nk, which=(2, 3))
        else: fill = []
        interleave(A, mf(k, k == 0), fill)
    A("s_nop 11")
    for tt in range(2):
        for r in range(32): A(f"v_mul_f32 {v(ACC3+32*tt+r)}, {v(vR2[tt])}, {v(ACC3+32*tt+r)}")
    ST.mark()
    A(f"s_mov_b32 {s(sCnt)}, {SPIN_MAX}")
    A.label("O_POLL")
    for k in range(28, 36): emit(loads(k, which=(0, 1)))
    A("s_waitcnt vmcnt(0)")
    regs = [RING + 16*(k % NR) + 4*i for k in range(28, 36) for i in (0, 1)]
    A(f"v_max3_u32 {v(T[0])}, {v(regs[0])}, {v(regs[1])}, {v(regs[2])}")
    for k in range(3, 15, 2): A(f"v_max3_u32 {v(T[0])}, {v(T[0])}, {v(regs[k])}, {v(regs[k+1])}")
    A(f"v_max_u32 {v(T[0])}, {v(T[0])}, {v(regs[15])}")
    A(f"v_cmp_eq_u32 vcc, -1, {v(T[0])}")
    A("s_cbranch_vccz O_OK")
    A(f"s_sub_u32 {s(sCnt)}, {s(sCnt)}, 1")
    A(f"s_cmp_lg_u32 {s(sCnt)}, 0")
    A("s_cbranch_scc1 O_POLL")
    A.label("O_OK")
    ST.mark()
    for k in range(28, 36): emit(mf(k))
    LR = 65536
    A(f"s_lshl_b32 {s(sT0)}, {s(sW)}, 12")
    A(f"s_add_u32 {s(sT0)}, {s(sT0)}, {LR}")
    A(f"v_lshl_add_u32 {v(T[2])}, {v(vL)}, 4, {s(sT0)}")
    A(f"s_lshl_b32 {s(sT0)}, {s(sW)}, 14")
    A(f"s_add_u32 {s(sT0)}, {s(sT0)}, {LR}")
    A(f"v_lshl_add_u32 {v(T[3])}, {v(vL)}, 4, {s(sT0)}")
    A("s_nop 3")
    for j in range(4):
        for qq in range(4):
            A(f"ds_write_b128 {v(T[2])}, {v(ACC3+16*j+4*qq,4)} offset:{j*16384+qq*1024}")
        if j >= 2: A("s_waitcnt lgkmcnt(4)")
    A("s_waitcnt lgkmcnt(0)")
    A("s_barrier")
    for w in range(4):
        for qq in range(4):
            A(f"ds_read_b128 {v(ACC3+16*w+4*qq,4)}, {v(T[3])} offset:{w*4096+qq*1024}")
        if w == 2:
            A("s_waitcnt lgkmcnt(4)")
            for r in range(16): A(f"v_add_f32 {v(ACC3+r)}, {v(ACC3+r)}, {v(ACC3+16+r)}")
    for k in range(8):
        A(f"v_lshlrev_b32 {v(ACC3+16+2*k)}, 16, {v(XR+k)}")
        A(f"v_and_b32 {v(ACC3+16+2*k+1)}, 0xffff0000, {v(XR+k)}")
    for r in range(16): A(f"v_add_f32 {v(ACC3+r)}, {v(ACC3+r)}, {v(ACC3+16+r)}")
    A("s_waitcnt lgkmcnt(0)")
    for r in range(16): A(f"v_add_f32 {v(ACC3+32+r)}, {v(ACC3+32+r)}, {v(ACC3+48+r)}")
    for r in range(16): A(f"v_add_f32 {v(ACC3+r)}, {v(ACC3+r)}, {v(ACC3+32+r)}")
    for k in range(8): A(f"v_cvt_pk_bf16_f32 {v(ACC3+k)}, {v(ACC3+2*k)}, {v(ACC3+2*k+1)}")
    A(f"buffer_store_dwordx4 {v(ACC3,4)}, {v(vOut)}, {s(rO,4)}, 0 offen")
    A(f"buffer_store_dwordx4 {v(ACC3+4,4)}, {v(vOut)}, {s(rO,4)}, 0 offen offset:16")
    ST.finish(sW8, rW, T[3], T[4], 1)
    A("s_endpgm")
    return A

def build(out, **kw):
    A = gen(**kw)
    bad = check(A.lines, "fused")
    assert bad == 0
    kn = NAME + "_kernel"
    t = HEADER + "; @launch grid=(256,1,1) block=(512,1,1) lds=163840\n"
    t += '.amdgcn_target "amdgcn-amd-amdhsa--gfx950"\n.text\n' + kernel_text(kn, A) + '.section .rodata,"a"\n' + kd_text(kn, 256, 256)
    open(out, "w").write(t)
    print("wrote", out, len(t), "instrs", len(A.lines))
if __name__ == "__main__":
    out = sys.argv[1] if len(sys.argv) > 1 else "cdna_kernels/" + NAME + ".s"
    build(out, st="--stamps" in sys.argv)
```
